```python
import torch

def _softmax(x, axis=-1):
    return torch.softmax(x, dim=axis)

def _gelu(x):
    return torch.nn.functional.gelu(x, approximate='tanh')

def _silu(x):
    return torch.nn.functional.silu(x)

def _sigmoid(x):
    return torch.sigmoid(x)

def _layernorm(x, axis=-1, eps=1e-05):
    m = x.mean(dim=axis, keepdim=True)
    v = x.var(dim=axis, keepdim=True, unbiased=False)
    return (x - m) / torch.sqrt(v + eps)

def _scatter_add(tgt, idx, src, axis=0):
    return tgt.clone().index_add_(axis, idx, src)

def _segment_sum(src, seg, n):
    out = torch.zeros((n,) + src.shape[1:], dtype=src.dtype)
    return out.index_add_(0, seg, src)

def _pad(x, pw):
    flat = tuple((v for pair in reversed(pw) for v in pair))
    return torch.nn.functional.pad(x, flat)
kernel_name = 'adaLN_cond__sliding_block_cached__mixer_gmlp__prompt'

def setup_inputs():

    _w = lambda a: (lambda t: t.to(torch.bfloat16) if t.is_floating_point() else t)(torch.as_tensor(a))

    def _A_setup():
        B, Sq, D = (1, 2048, 512)
        Hq, Hkv, Sk, Dh = (32, 8, 2048, 128)
        assert Hq % Hkv == 0, (Hq, Hkv)
        return {'x': _w((lambda *s: torch.randn(*s, dtype=torch.bfloat16) * 0.1)(B, Sq, D)), 'k_cache': _w((lambda *s: torch.randn(*s, dtype=torch.bfloat16) * 0.8)(B, Hkv, Sk, Dh)), 'v_cache': _w((lambda *s: torch.randn(*s, dtype=torch.bfloat16) * 1.6)(B, Hkv, Sk, Dh)), 'wq': _w((lambda *s: torch.randn(*s, dtype=torch.bfloat16) * 0.8)(D, Hq * Dh) * D ** (-0.5)), 'wo': _w((lambda *s: torch.randn(*s, dtype=torch.bfloat16) * 1.6)(Hq * Dh, D) * (Hq * Dh) ** (-0.5))}
    _A_in = _A_setup()

    def _B_setup():
        B, S, D, F = (1, 2048, 512, 1792)
        Fh = F // 2
        return {'x': _w((lambda *s: torch.randn(*s, dtype=torch.bfloat16) * 0.1)(B, S, D)), 'w_in': _w((lambda *s: torch.randn(*s, dtype=torch.bfloat16) * 1.6)(D, 2 * Fh)), 'w_sp': _w(0.01 * (lambda *s: torch.randn(*s, dtype=torch.bfloat16) * 1.6)(S, S)), 'b_sp': _w(1.0 + 0.01 * (lambda *s: torch.randn(*s, dtype=torch.bfloat16) * 0.2)(S)), 'w_out': _w((lambda *s: torch.randn(*s, dtype=torch.bfloat16) * 0.2)(Fh, D))}
    _B_in = _B_setup()
    return {'A_x': _A_in['x'], 'A_k_cache': _A_in['k_cache'], 'A_v_cache': _A_in['v_cache'], 'A_wq': _A_in['wq'], 'A_wo': _A_in['wo'], 'B_x': _B_in['x'], 'B_w_in': _B_in['w_in'], 'B_w_sp': _B_in['w_sp'], 'B_b_sp': _B_in['b_sp'], 'B_w_out': _B_in['w_out'], 'c': _w((lambda *s: torch.randn(*s, dtype=torch.bfloat16) * 0.8)(1, 512) * 8.0), 'w_mod': _w((lambda *s: torch.randn(*s, dtype=torch.bfloat16) * 0.8)(512, 6 * 512) * 512 ** (-0.5) * 8.0)}

def reference(A_x, A_k_cache, A_v_cache, A_wq, A_wo, B_x, B_w_in, B_w_sp, B_b_sp, B_w_out, c, w_mod):

    def _A_ref(x, k_cache, v_cache, wq, wo):
        B, Sq, D = x.shape
        Hq, Dh = (32, 128)
        Hkv, Sk = (k_cache.shape[1], k_cache.shape[2])
        W = min(4096, max(256, Sk // 4))
        rep = Hq // Hkv
        q = (lambda x, *d: x.permute(*d))((x @ wq).reshape(B, Sq, Hq, Dh), 0, 2, 1, 3)
        k = (lambda x, n, axis: torch.repeat_interleave(x, n, dim=axis))(k_cache[:, :, Sk - W:, :], rep, axis=1)
        v = (lambda x, n, axis: torch.repeat_interleave(x, n, dim=axis))(v_cache[:, :, Sk - W:, :], rep, axis=1)
        scores = torch.einsum('bhqd,bhkd->bhqk', q, k) * Dh ** (-0.5)
        p = _softmax(scores, axis=-1)
        o = torch.einsum('bhqk,bhkd->bhqd', p, v)
        return (lambda x, *d: x.permute(*d))(o, 0, 2, 1, 3).reshape(B, Sq, Hq * Dh) @ wo

    def _B_ref(x, w_in, w_sp, b_sp, w_out):
        B, S, D = x.shape
        F = w_in.shape[-1]
        Fh = F // 2
        z = _gelu(torch.einsum('bsd,df->bsf', x, w_in))
        z1 = z[..., :Fh].clone()
        z2 = _layernorm(z[..., Fh:], axis=-1)
        g = torch.einsum('ts,bsf->btf', w_sp, z2) + b_sp[None, :, None]
        return torch.einsum('bsf,fd->bsd', z1 * g, w_out)
    x = A_x
    mod = (_silu(c) @ w_mod).reshape(c.shape[0], 6, 1, -1)
    sa, ca, ga, sb, cb, gb = (mod[:, 0].clone(), mod[:, 1].clone(), mod[:, 2].clone(), mod[:, 3].clone(), mod[:, 4].clone(), mod[:, 5].clone())
    h = _layernorm(x, axis=-1) * (1 + ca) + sa
    x = x + ga * _A_ref(h, A_k_cache, A_v_cache, A_wq, A_wo)
    h = _layernorm(x, axis=-1) * (1 + cb) + sb
    x = x + gb * _B_ref(h, B_w_in, B_w_sp, B_b_sp, B_w_out)
    return x
```

```python
import re

REG_RE = re.compile(r'^(v|s|a)(\d+)$')
RNG_RE = re.compile(r'^(v|s|a)\[(\d+):(\d+)\]$')

def regs_of(tok):
    tok = tok.strip()
    neg = tok
    tok = re.sub(r'^-', '', tok)
    m = re.match(r'^(abs|neg)\((.*)\)$', tok)
    if m: tok = m.group(2)
    tok = tok.strip('|')
    m = REG_RE.match(tok)
    if m: return {(m.group(1), int(m.group(2)))}
    m = RNG_RE.match(tok)
    if m: return {(m.group(1), i) for i in range(int(m.group(2)), int(m.group(3)) + 1)}
    if tok == 'vcc': return {('s', 106), ('s', 107)}
    if tok == 'vcc_lo': return {('s', 106)}
    if tok == 'vcc_hi': return {('s', 107)}
    if tok == 'exec': return {('s', 126), ('s', 127)}
    if tok == 'm0': return {('s', 124)}
    return set()

TRANS = ('v_exp_f32', 'v_log_f32', 'v_rcp_f32', 'v_rsq_f32', 'v_sqrt_f32', 'v_sin_f32', 'v_cos_f32', 'v_rcp_iflag_f32')

class Ins:
    __slots__ = ('text', 'op', 'ops', 'mods', 'defs', 'uses', 'cls', 'tag', 'passes', 'srcc', 'srcab', 'wide_store', 'is_dpp', 'comment')
    def __init__(self, text, tag=None):
        self.text = text.strip(); self.tag = tag
        t = self.text.split(';')[0].strip()
        parts = t.split(None, 1)
        self.op = parts[0] if parts else ''
        rest = parts[1] if len(parts) > 1 else ''
        toks = []; depth = 0; cur = ''
        for ch in rest:
            if ch == '[': depth += 1
            if ch == ']': depth -= 1
            if ch == ',' and depth == 0: toks.append(cur.strip()); cur = ''
            else: cur += ch
        if cur.strip(): toks.append(cur.strip())
        mods = ''
        if toks:
            last = toks[-1].split(None, 1)
            toks[-1] = last[0]
            if len(last) > 1: mods = last[1]
        self.ops = toks; self.mods = mods
        self.passes = 0; self.srcc = set(); self.srcab = set(); self.wide_store = False; self.is_dpp = False
        self.classify()
    def classify(self):
        op = self.op; o = self.ops; R = regs_of
        d = set(); u = set(); cls = 'other'
        base = re.sub(r'_(e32|e64|dpp|sdwa)$', '', op)
        if op.endswith(':') or op == '' or op.startswith('.'):
            cls = 'label'
        elif op.startswith('v_mfma'):
            cls = 'mfma'; d = R(o[0]); self.srcab = R(o[1]) | R(o[2]); self.srcc = R(o[3]); u = self.srcab | self.srcc
            self.passes = 8 if '32x32x16' in op else 4 if '16x16x32' in op else None
            assert self.passes, op
        elif op.startswith('v_'):
            cls = 'trans' if base in TRANS else 'valu'
            if 'row_' in self.mods or 'quad_perm' in self.mods or 'wave_' in self.mods or op.endswith('_dpp'):
                self.is_dpp = True
            if base.startswith('v_permlane') and 'swap' in base:
                d = R(o[0]) | R(o[1]); u = set(d); cls = 'permlane'
            elif base in ('v_add_co_u32', 'v_sub_co_u32', 'v_subrev_co_u32', 'v_addc_co_u32', 'v_subb_co_u32', 'v_mad_u64_u32', 'v_div_scale_f32'):
                d = R(o[0]) | R(o[1])
                for x in o[2:]: u |= R(x)
            elif base == 'v_nop':
                pass
            else:
                d = R(o[0])
                for x in o[1:]: u |= R(x)
                if base.startswith('v_fmac') or base.startswith('v_pk_fmac') or base.startswith('v_dot2c') or self.is_dpp or base.startswith('v_writelane') or op.endswith('_sdwa'):
                    u |= d
                if base in ('v_readfirstlane_b32', 'v_readlane_b32'): cls = 'readlane'
                if base.startswith('v_cmpx'): d |= R('exec')
            u |= R('exec')
        elif op.startswith('ds_'):
            cls = 'ds'
            if op.startswith('ds_read') or op.startswith('ds_bpermute') or op.startswith('ds_permute') or op.startswith('ds_swizzle') or '_rtn' in op:
                d = R(o[0])
                for x in o[1:]: u |= R(x)
            else:
                for x in o: u |= R(x)
        elif op.startswith('buffer_') or op.startswith('global_'):
            cls = 'vm'
            mods = self.mods.split()
            if op in ('buffer_wbl2', 'buffer_inv'):
                pass
            elif op.startswith('buffer_load'):
                if 'lds' in mods:
                    for x in o: u |= R(x)
                    u |= R('m0'); cls = 'vmlds'
                else:
                    d = R(o[0])
                    for x in o[1:]: u |= R(x)
            elif op.startswith('global_load_lds'):
                for x in o: u |= R(x)
                u |= R('m0'); cls = 'vmlds'
            elif op.startswith('global_load'):
                d = R(o[0])
                for x in o[1:]: u |= R(x)
            elif 'atomic' in op:
                rtn = 'sc0' in mods
                if op.startswith('buffer_'):
                    for x in o: u |= R(x)
                    if rtn: d = R(o[0])
                else:
                    if rtn:
                        d = R(o[0])
                        for x in o[1:]: u |= R(x)
                    else:
                        for x in o: u |= R(x)
            else:
                for x in o: u |= R(x)
                if op.endswith('x4') or op.endswith('x3'):
                    self.wide_store = True
                    self.srcab = R(o[0]) if op.startswith('buffer_') else R(o[1])
        elif op.startswith('s_load') or op.startswith('s_buffer_load') or op in ('s_memtime', 's_memrealtime'):
            cls = 'smem'; d = R(o[0])
            for x in o[1:]: u |= R(x)
        elif op.startswith('s_'):
            cls = 'salu'
            if op in ('s_waitcnt', 's_barrier', 's_nop', 's_endpgm', 's_setprio', 's_sleep', 's_branch') or op.startswith('s_cbranch'):
                cls = 'ctl'
                if op in ('s_cbranch_vccz', 's_cbranch_vccnz'): u |= R('vcc')
                if op in ('s_cbranch_execz', 's_cbranch_execnz'): u |= R('exec')
            elif op.startswith('s_cmp') or op.startswith('s_bitcmp'):
                for x in o: u |= R(x)
            else:
                d = R(o[0])
                for x in o[1:]: u |= R(x)
                if 'saveexec' in op: d |= R('exec'); u |= R('exec')
                if op in ('s_addk_i32', 's_mulk_i32', 's_cmov_b32', 's_cmov_b64'): u |= d
        else:
            raise ValueError('unknown instruction ' + self.text)
        self.defs = d; self.uses = u; self.cls = cls

class Kernel:
    def __init__(self, name, vgprs=256, sgprs=102, accum=None):
        self.name = name; self.items = []; self.vgprs = vgprs; self.sgprs = sgprs; self.accum = accum
        self.uniq = 0
    def __call__(self, text, tag=None):
        for line in text.strip().split('\n'):
            line = line.strip()
            if not line or line.startswith(';'): continue
            self.items.append(Ins(line, tag))
        return self
    def label(self, name):
        self.items.append(('label', name))
    def wait_vm(self, tag):
        self.items.append(('wait_vm', tag))
    def wait_lgkm(self, tag):
        self.items.append(('wait_lgkm', tag))
    def drain(self, vm=True, lgkm=True):
        self.items.append(('drain', vm, lgkm))
    def comment(self, s):
        self.items.append(('comment', s))
    def finalize(self):
        out = []
        vm = []
        lg = []
        pos = 0
        lastw = {}
        mfma_c_read = {}
        store_data = {}
        stats = dict(nops=0, waits=0, n=0)
        def emit(text):
            out.append('    ' + text)
        def do_wait(nvm, nlg):
            nonlocal pos, vm, lg
            parts = []
            if nvm is not None:
                nvm = min(nvm, 63)
                if nvm < len(vm):
                    parts.append(f'vmcnt({nvm})'); vm = vm[len(vm) - nvm:] if nvm else []
            if nlg is not None:
                nlg = min(nlg, 15)
                if nlg < len(lg):
                    parts.append(f'lgkmcnt({nlg})'); lg = lg[len(lg) - nlg:] if nlg else []
            if parts:
                emit('s_waitcnt ' + ' '.join(parts)); pos += 1; stats['waits'] += 1
        for it in self.items:
            if isinstance(it, tuple):
                if it[0] == 'label':
                    out.append(it[1] + ':')
                    vm = []; lg = []
                elif it[0] == 'rawlabel':
                    out.append(it[1] + ':')
                elif it[0] == 'comment':
                    out.append('    ; ' + it[1])
                elif it[0] == 'wait_vm':
                    idx = [i for i, e in enumerate(vm) if e['tag'] == it[1]]
                    if idx: do_wait(len(vm) - 1 - idx[-1], None)
                elif it[0] == 'wait_lgkm':
                    idx = [i for i, e in enumerate(lg) if e['tag'] == it[1]]
                    if idx:
                        n = len(lg) - 1 - idx[-1]
                        if any(e['smem'] for e in lg): n = 0
                        do_wait(None, n)
                elif it[0] == 'drain':
                    do_wait(0 if it[1] else None, 0 if it[2] else None)
                continue
            ins = it
            if ins.op == 's_waitcnt':
                m = re.search(r'vmcnt\((\d+)\)', ins.text); m2 = re.search(r'lgkmcnt\((\d+)\)', ins.text)
                if m:
                    n = int(m.group(1)); vm = vm[len(vm) - n:] if 0 < n < len(vm) else ([] if n == 0 else vm)
                if m2:
                    n = int(m2.group(1)); lg = lg[len(lg) - n:] if 0 < n < len(lg) else ([] if n == 0 else lg)
                emit(ins.text); pos += 1; continue
            touched = ins.uses | ins.defs
            nvm = None; nlg = None
            for i, e in enumerate(vm):
                hit = e['defs'] & ins.uses or (e['defs'] & ins.defs and ins.cls != 'vm')
                if hit: nvm = len(vm) - 1 - i
            for i, e in enumerate(lg):
                hit = e['defs'] & ins.uses or (e['defs'] & ins.defs and not (ins.cls == 'ds' and not e['smem']))
                if hit: nlg = len(lg) - 1 - i
            if nlg is not None and any(e['smem'] for e in lg): nlg = 0
            do_wait(nvm, nlg)
            need = 0
            def req(p, n):
                nonlocal need
                need = max(need, p + n + 1 - pos)
            isvalu = ins.cls in ('valu', 'trans', 'permlane', 'readlane')
            for r in ins.uses:
                w = lastw.get(r)
                if not w: continue
                p, c, ps, wi = w
                if c == 'mfma':
                    if ins.cls == 'mfma':
                        if r in ins.srcab: req(p, 12 if ps == 8 else 8)
                        elif r in ins.srcc:
                            if not (wi.defs == ins.srcc and ps == ins.passes): req(p, 10 if ps == 8 else 6)
                    else: req(p, 12 if ps == 8 else 8)
                elif c in ('valu', 'trans', 'permlane', 'readlane'):
                    if r[0] in 'va':
                        if ins.cls == 'mfma': req(p, 2)
                        if ins.cls == 'permlane' or ins.is_dpp: req(p, 2)
                        if ins.cls == 'readlane': req(p, 1)
                        if c == 'trans' and isvalu: req(p, 1)
                        if c == 'trans' and ins.cls in ('ds', 'vm', 'vmlds'): req(p, 1)
                    else:
                        if r in (('s', 126), ('s', 127)):
                            if ins.cls == 'mfma': req(p, 4)
                            if ins.is_dpp: req(p, 5)
                            if ins.cls in ('readlane', 'permlane'): req(p, 4)
                        elif isvalu: req(p, 4 if ins.cls == 'readlane' else 2)
                        elif ins.cls in ('vm', 'vmlds'): req(p, 5)
                        elif ins.cls in ('salu', 'ctl', 'smem'): req(p, 1)
                elif c == 'salu':
                    if r == ('s', 124) and ins.cls == 'vmlds': req(p, 1)
            for r in ins.defs:
                w = lastw.get(r)
                if w and w[1] == 'mfma':
                    p, c, ps, wi = w
                    if ins.cls == 'mfma':
                        if not (wi.defs == ins.defs and ps == ins.passes): req(p, 10 if ps == 8 else 6)
                    else: req(p, 12 if ps == 8 else 8)
                if r in mfma_c_read and ins.cls != 'mfma':
                    p, ps = mfma_c_read[r]; req(p, 7 if ps == 8 else 3)
                if r in store_data: req(store_data[r], 2)
            while need > 0:
                n = min(need, 16)
                emit(f's_nop {n - 1}'); pos += n; need -= n; stats['nops'] += n
            emit(ins.text)
            stats['n'] += 1
            for r in ins.defs:
                if ins.cls in ('vm', 'ds', 'smem'): lastw.pop(r, None)
                else: lastw[r] = (pos, ins.cls, ins.passes, ins)
            if ins.cls == 'mfma':
                for r in ins.srcc: mfma_c_read[r] = (pos, ins.passes)
            if ins.wide_store:
                for r in ins.srcab: store_data[r] = pos
            if ins.cls in ('vm', 'vmlds'): vm.append(dict(defs=set(ins.defs), tag=ins.tag))
            if ins.cls == 'ds': lg.append(dict(defs=set(ins.defs), tag=ins.tag, smem=False))
            if ins.cls == 'smem':
                lg.append(dict(defs=set(ins.defs), tag=ins.tag, smem=True)); lg.append(dict(defs=set(), tag=None, smem=True))
            if ins.op == 's_nop': pos += int(ins.ops[0], 0) + 1
            else: pos += 1
        self.stats = stats
        return out
    def maxreg(self, kind):
        m = -1
        for it in self.items:
            if isinstance(it, Ins):
                for k, i in it.defs | it.uses:
                    if k == kind and not (k == 's' and i >= 102): m = max(m, i)
        return m
    def text(self):
        body = self.finalize()
        head = [f'.globl {self.name}', '.p2align 8', f'.type {self.name},@function', f'{self.name}:']
        return '\n'.join(head + body)
    def descriptor(self):
        nv = self.maxreg('v') + 1; na = self.maxreg('a') + 1; ns = self.maxreg('s') + 1
        acc = max(4, (nv + 3) // 4 * 4)
        nfv = acc + na if na else nv
        assert acc <= 256 and nfv <= 512
        return f""".p2align 6
.amdhsa_kernel {self.name}
  .amdhsa_next_free_vgpr {nfv}
  .amdhsa_next_free_sgpr {max(ns, 16)}
  .amdhsa_accum_offset {acc}
  .amdhsa_group_segment_fixed_size 0
  .amdhsa_kernarg_size 120
  .amdhsa_user_sgpr_count 2
  .amdhsa_user_sgpr_kernarg_segment_ptr 1
  .amdhsa_system_sgpr_workgroup_id_x 1
.end_amdhsa_kernel"""

def vr(a, n=1):
    return f'v{a}' if n == 1 else f'v[{a}:{a + n - 1}]'
def sr(a, n=1):
    return f's{a}' if n == 1 else f's[{a}:{a + n - 1}]'

def interleave(main, fillers):
    slots = [[] for _ in main]
    for start, end, ins in fillers:
        n = len(ins); span = end - start
        for j, x in enumerate(ins):
            slots[start + (j * span) // n].append(x)
    out = []
    for m, s in zip(main, slots):
        out.append(m); out.extend(s)
    return out
```

```python
from asmlib import *
from layout import *

def load_srd(k, s, arg):
    k(f's_load_dwordx2 s[{s}:{s+1}], s[0:1], {arg}')
    k(f's_mov_b32 s{s+2}, {SZ[arg]}')
    k(f's_mov_b32 s{s+3}, 0x20000')

def allreduce64(k, v, t, op='v_add_f32'):
    for r in (8, 4, 2, 1):
        k(f'{op}_dpp v{v}, v{v}, v{v} row_ror:{r} row_mask:0xf bank_mask:0xf')
    k(f'v_mov_b32 v{t}, v{v}\nv_permlane16_swap_b32 v{v}, v{t}\n{op} v{v}, v{v}, v{t}')
    k(f'v_mov_b32 v{t}, v{v}\nv_permlane32_swap_b32 v{v}, v{t}\n{op} v{v}, v{v}, v{t}')

def ln_row(k):
    k('s_mov_b32 s27, 0xffff0000')
    k('s_waitcnt vmcnt(8)')
    for i in range(8):
        if i & 1: k(f'v_and_b32 v{84 + i}, s27, v{80 + (i >> 1)}')
        else: k(f'v_lshlrev_b32 v{84 + i}, 16, v{80 + (i >> 1)}')
    k('v_add_f32 v92, v84, v85\nv_add_f32 v93, v86, v87\nv_add_f32 v94, v88, v89\nv_add_f32 v95, v90, v91')
    k('v_add_f32 v92, v92, v93\nv_add_f32 v94, v94, v95\nv_add_f32 v92, v92, v94')
    allreduce64(k, 92, 93)
    k('v_mul_f32 v92, 0x3b000000, v92')
    for i in range(8): k(f'v_sub_f32 v{84 + i}, v{84 + i}, v92')
    k('v_mul_f32 v92, v84, v84\nv_mul_f32 v93, v85, v85')
    for i in range(2, 8): k(f'v_fmac_f32 v{92 + (i & 1)}, v{84 + i}, v{84 + i}')
    k('v_add_f32 v92, v92, v93')
    allreduce64(k, 92, 93)
    k('v_mov_b32 v93, 0x3727c5ac')
    k('v_fmac_f32 v93, 0x3b000000, v92')
    k('v_rsq_f32 v93, v93')
    for i in range(8): k(f'v_mul_f32 v{84 + i}, v{84 + i}, v93')
    for i in range(4): k(f'v_cvt_pk_bf16_f32 v{80 + i}, v{84 + 2 * i}, v{85 + 2 * i}')
    k(f's_add_u32 s27, s17, {XN}')
    k('buffer_store_dwordx4 v[80:83], v3, s[4:7], s27 offen')

def gen_k0():
    k = Kernel('prep_kernel')
    k('s_cmp_ge_u32 s2, 256\ns_cbranch_scc1 L_k0_end')
    load_srd(k, 4, A_WS)
    load_srd(k, 12, A_X)
    k('v_and_b32 v1, 63, v0')
    k('v_lshrrev_b32 v2, 6, v0')
    k('v_readfirstlane_b32 s16, v2')
    k('s_lshl_b32 s17, s2, 13')
    k('v_lshlrev_b32 v3, 4, v0')
    k('buffer_load_dwordx4 v[80:83], v3, s[12:15], s17 offen')
    k(f's_lshl_b32 s18, s2, 8\ns_add_u32 s18, s18, {STATS}\nv_mov_b32 v4, -1\nv_lshlrev_b32 v5, 2, v1')
    k('s_cmp_lg_u32 s16, 0\ns_cbranch_scc1 L_k0_nofill')
    k('buffer_store_dword v4, v5, s[4:7], s18 offen')
    k.items.append(('rawlabel', 'L_k0_nofill'))
    for lim, name in ((64, 'wq'), (128, 'wo'), (142, 'wout'), (170, 'win'), (186, 'v'), (202, 'k'), (250, 'mod')):
        k(f's_cmp_lt_u32 s2, {lim}\ns_cbranch_scc1 L_k0_{name}')
    k('s_waitcnt vmcnt(0)')
    ln_row(k)
    k('s_endpgm')

    def trans_job(name, first, arg, RS, RB, setup):
        k.label(f'L_k0_{name}')
        load_srd(k, 8, arg)
        k(f's_sub_u32 s18, s2, {first}')
        setup()
        rows_per = 1024 // RB
        lanes_per_row = RB // 16
        k(f'v_lshrrev_b32 v4, {lanes_per_row.bit_length() - 1}, v1')
        k(f'v_lshl_add_u32 v4, v2, {(8 * rows_per).bit_length() - 1}, v4')
        k(f's_mov_b32 s21, {RS}')
        k('v_mul_lo_u32 v4, v4, s21')
        k(f'v_and_b32 v5, {lanes_per_row - 1}, v1')
        k('v_lshl_add_u32 v4, v5, 4, v4')
        k('s_lshl_b32 s22, s16, 13')
        for i in range(8):
            k(f's_add_u32 m0, s22, {1024 * i}')
            k(f's_add_u32 s23, s19, {i * rows_per * RS}')
            k('buffer_load_dwordx4 v4, s[8:11], s23 offen lds', tag='dma')
        k('v_lshrrev_b32 v6, 5, v1')
        k('v_bfe_u32 v7, v1, 2, 2')
        k('v_lshl_add_u32 v6, v6, 3, v7')
        k(f'v_lshlrev_b32 v6, {RB.bit_length() - 1}, v6')
        k('v_bfe_u32 v7, v1, 4, 1')
        k('v_lshl_add_u32 v6, v7, 5, v6')
        k('v_and_b32 v7, 1, v1')
        k('v_lshl_add_u32 v6, v7, 4, v6')
        k('v_bfe_u32 v7, v1, 1, 1')
        k('v_lshl_add_u32 v6, v7, 3, v6')
        wavepart = {1024: 128, 512: 64, 256: 8192}[RB]
        k(f'v_lshl_add_u32 v6, v2, {wavepart.bit_length() - 1}, v6')
        k('v_lshlrev_b32 v8, 4, v1')
        ln_row(k)
        k.wait_vm('dma')
        k('s_barrier')
        frs = []
        for f in range(8):
            if RB == 1024: sl, tl = f >> 1, f & 1
            elif RB == 512: sl, tl = f, 0
            else: sl, tl = f >> 2, f & 3
            for m in range(2):
                off = (16 * sl + 4 * m) * RB + 64 * tl
                k(f'ds_read_b64_tr_b16 v[{16 + 4 * f + 2 * m}:{17 + 4 * f + 2 * m}], v6 offset:{off}')
        k('s_add_u32 s21, s20, 4096')
        for f in range(8):
            k(f'buffer_store_dwordx4 v[{16 + 4 * f}:{19 + 4 * f}], v8, s[4:7], s{20 + (f >> 2)} offen offset:{1024 * (f & 3)}')
        k('s_endpgm')

    def s_wq():
        k('s_lshr_b32 s24, s18, 3\ns_and_b32 s25, s18, 7')
        k('s_lshl_b32 s19, s24, 19\ns_lshl_b32 s26, s25, 10\ns_add_u32 s19, s19, s26')
        k('s_lshl_b32 s20, s25, 3\ns_add_u32 s20, s20, s16\ns_lshl_b32 s20, s20, 16')
        k(f's_lshl_b32 s26, s24, 13\ns_add_u32 s20, s20, s26\ns_add_u32 s20, s20, {WQF}')
    trans_job('wq', 0, A_WQ, 8192, 1024, s_wq)
    def s_wo():
        k('s_lshl_b32 s19, s18, 16')
        k('s_and_b32 s24, s18, 0x38\ns_add_u32 s20, s24, s16\ns_lshl_b32 s20, s20, 16')
        k(f's_and_b32 s24, s18, 7\ns_lshl_b32 s24, s24, 13\ns_add_u32 s20, s20, s24\ns_add_u32 s20, s20, {WOF}')
    trans_job('wo', 64, A_WO, 1024, 1024, s_wo)
    def s_wout():
        k('s_lshl_b32 s19, s18, 16')
        k(f's_mul_i32 s20, s16, {56 * 2048}\ns_lshl_b32 s24, s18, 13\ns_add_u32 s20, s20, s24\ns_add_u32 s20, s20, {WOUTF}')
    trans_job('wout', 128, A_WOUT, 1024, 1024, s_wout)
    def s_win():
        k('s_mul_i32 s24, s18, 37\ns_lshr_b32 s24, s24, 8')
        k('s_mul_i32 s25, s24, 7\ns_sub_u32 s25, s18, s25')
        k(f's_mul_i32 s19, s24, {128 * 3584}\ns_lshl_b32 s26, s25, 9\ns_add_u32 s19, s19, s26')
        k('s_lshl_b32 s20, s25, 3\ns_add_u32 s20, s20, s16\ns_lshl_b32 s20, s20, 15')
        k(f's_lshl_b32 s26, s24, 13\ns_add_u32 s20, s20, s26\ns_add_u32 s20, s20, {WINF}')
    assert all((j * 37) >> 8 == j // 7 for j in range(28))
    trans_job('win', 142, A_WIN, 3584, 512, s_win)
    def s_v():
        k('s_lshr_b32 s24, s18, 1\ns_and_b32 s25, s18, 1')
        k(f's_lshl_b32 s19, s24, 19\ns_lshl_b32 s26, s25, 16\ns_add_u32 s19, s19, s26\ns_add_u32 s19, s19, {1536 * 256}')
        k(f's_lshl_b32 s20, s18, 16\ns_lshl_b32 s26, s16, 13\ns_add_u32 s20, s20, s26\ns_add_u32 s20, s20, {VF}')
    trans_job('v', 170, A_V, 256, 256, s_v)

    k.label('L_k0_k')
    load_srd(k, 8, A_K)
    k('s_sub_u32 s18, s2, 186')
    k('s_lshr_b32 s24, s18, 1\ns_and_b32 s25, s18, 1')
    k(f's_lshl_b32 s19, s24, 19\ns_lshl_b32 s26, s25, 16\ns_add_u32 s19, s19, s26\ns_add_u32 s19, s19, {1536 * 256}')
    k('s_lshl_b32 s26, s16, 13\ns_add_u32 s19, s19, s26')
    k(f's_lshl_b32 s20, s18, 16\ns_add_u32 s20, s20, s26\ns_add_u32 s20, s20, {KF}')
    k('v_and_b32 v4, 0x13, v1')
    k('v_and_b32 v5, 4, v1\nv_lshl_or_b32 v4, v5, 1, v4')
    k('v_and_b32 v5, 8, v1\nv_lshrrev_b32 v5, 1, v5\nv_or_b32 v4, v4, v5')
    k('v_lshlrev_b32 v4, 8, v4')
    k('v_lshrrev_b32 v5, 5, v1\nv_lshl_add_u32 v4, v5, 4, v4')
    k('v_lshlrev_b32 v8, 4, v1')
    for f in range(8):
        k(f'buffer_load_dwordx4 v[{16 + 4 * f}:{19 + 4 * f}], v4, s[8:11], s19 offen offset:{32 * f}')
    ln_row(k)
    k('s_add_u32 s21, s20, 4096')
    for f in range(8):
        k(f'buffer_store_dwordx4 v[{16 + 4 * f}:{19 + 4 * f}], v8, s[4:7], s{20 + (f >> 2)} offen offset:{1024 * (f & 3)}')
    k('s_endpgm')

    k.label('L_k0_mod')
    load_srd(k, 8, A_WMOD)
    load_srd(k, 12, A_C)
    k('s_sub_u32 s18, s2, 202')
    k('s_lshl_b32 s19, s18, 7')
    k('v_lshrrev_b32 v4, 3, v0')
    k('v_and_b32 v5, 7, v0')
    k('v_lshlrev_b32 v6, 4, v4')
    k('buffer_load_dwordx4 v[8:11], v6, s[12:15], 0 offen')
    k(f's_mov_b32 s21, {8 * 6144}')
    k('v_mul_lo_u32 v6, v4, s21')
    k('v_lshl_add_u32 v6, v5, 4, v6')
    for i in range(8):
        k(f's_add_u32 s23, s19, {i * 6144}')
        k(f'buffer_load_dwordx4 v[{16 + 4 * i}:{19 + 4 * i}], v6, s[8:11], s23 offen')
    ln_row(k)
    k('s_mov_b32 s24, 0xbfb8aa3b')
    k('s_mov_b32 s25, 0xffff0000')
    for i in range(8):
        src = 8 + (i >> 1)
        if i & 1: k(f'v_and_b32 v{48 + i}, s25, v{src}')
        else: k(f'v_lshlrev_b32 v{48 + i}, 16, v{src}')
    for i in range(8): k(f'v_mul_f32 v{56 + i}, s24, v{48 + i}')
    for i in range(8): k(f'v_exp_f32 v{56 + i}, v{56 + i}')
    for i in range(8): k(f'v_add_f32 v{56 + i}, 1.0, v{56 + i}')
    for i in range(8): k(f'v_rcp_f32 v{56 + i}, v{56 + i}')
    for i in range(8): k(f'v_mul_f32 v{48 + i}, v{48 + i}, v{56 + i}')
    for i in range(8): k(f'v_cvt_pk_bf16_f32 v{48 + i}, v{48 + i}, v{48 + i}')
    for i in range(8): k(f'v_and_b32 v{48 + i}, s25, v{48 + i}')
    for i in range(8):
        for j in range(8):
            src = 16 + 4 * i + (j >> 1)
            if j & 1: k(f'v_and_b32 v{72 + j}, s25, v{src}')
            else: k(f'v_lshlrev_b32 v{72 + j}, 16, v{src}')
        for j in range(8):
            if i == 0: k(f'v_mul_f32 v{64 + j}, v{48 + i}, v{72 + j}')
            else: k(f'v_fmac_f32 v{64 + j}, v{48 + i}, v{72 + j}')
    k('v_lshlrev_b32 v6, 5, v0')
    k('ds_write_b128 v6, v[64:67]\nds_write_b128 v6, v[68:71] offset:16')
    k('v_lshlrev_b32 v7, 11, v2\nv_lshl_add_u32 v7, v1, 2, v7')
    k.drain(vm=False)
    for i in range(8): k(f'ds_read_b32 v{16 + i}, v7 offset:{256 * i}')
    for i in range(1, 8): k(f'v_add_f32 v16, v16, v{16 + i}')
    k('v_lshlrev_b32 v7, 2, v0')
    k('ds_write_b32 v7, v16 offset:16384')
    k.drain(vm=False)
    k('s_barrier')
    k('s_cmp_lg_u32 s16, 0\ns_cbranch_scc1 L_k0_end')
    for i in range(8): k(f'ds_read_b32 v{16 + i}, v7 offset:{16384 + 256 * i}')
    for i in range(1, 8): k(f'v_add_f32 v16, v16, v{16 + i}')
    k('v_cvt_pk_bf16_f32 v16, v16, v16\nv_and_b32 v16, s25, v16')
    k('s_lshr_b32 s24, s18, 3')
    k('s_cmp_eq_u32 s24, 1\ns_cselect_b32 s26, 1.0, 0\ns_cmp_eq_u32 s24, 4\ns_cselect_b32 s26, 1.0, s26')
    k('v_add_f32 v16, s26, v16')
    k('v_cvt_pk_bf16_f32 v16, v16, v16\nv_and_b32 v16, s25, v16')
    k(f's_lshl_b32 s19, s18, 8\ns_add_u32 s19, s19, {MOD}')
    k('buffer_store_dword v16, v7, s[4:7], s19 offen')
    k.label('L_k0_end')
    k('s_endpgm')
    return k, (256, 512, 65536)
```

```python
from asmlib import *
from layout import *
from k0 import load_srd
import struct, math

def f32(x): return '0x%08x' % struct.unpack('<I', struct.pack('<f', x))[0]

REF_B = 50.0
REF_T = 80.0
L_K = [0, 32768]; L_VA = 65536; L_X = 98304; L_VPRE = 131072; L_VEND = 139264; L_H = 32768
vA0, vKa, vKb, vV1, vV2 = 1, 2, 3, 4, 5
vL, vL2, vMT, vT0, vT1, vO = 6, 7, 8, 9, 10, 11
vH = [12, 13, 14, 15, 2, 3, 6, 7]
FB = 16
CI = 48
QR = 64
OA = 96
SB = 160
SP = 224

def gen_k2(D=6, prio=False, stamps=False):
    k = Kernel('attn_kernel')
    ns = [0]
    def stamp():
        if stamps:
            k(f's_memtime s[{40 + 2 * ns[0]}:{41 + 2 * ns[0]}]'); ns[0] += 1
    k('s_cmp_ge_u32 s2, 256\ns_cbranch_scc1 L_k2_end')
    stamp()
    if stamps: k('s_memrealtime s[36:37]')
    load_srd(k, 4, A_WS)
    k('v_and_b32 v1, 63, v0\nv_lshrrev_b32 v9, 6, v0')
    k('v_readfirstlane_b32 s12, v9')
    k('s_and_b32 s13, s2, 7\ns_lshr_b32 s14, s2, 3')
    k('v_lshlrev_b32 v10, 5, v1')
    k('v_lshlrev_b32 v1, 4, v1')
    k(f's_lshl_b32 s15, s14, 16\ns_lshl_b32 s16, s12, 13\ns_add_u32 s15, s15, s16\ns_add_u32 s15, s15, {XN}\ns_add_u32 s16, s15, 4096')
    for j in range(8):
        k(f'buffer_load_dwordx4 {vr(FB + 4 * j, 4)}, v1, s[4:7], s{15 + (j >> 2)} offen offset:{1024 * (j & 3)}')
    assert MOD == 0
    k('buffer_load_dwordx4 v[96:99], v10, s[4:7], 0 offen\nbuffer_load_dwordx4 v[100:103], v10, s[4:7], 0 offen offset:16')
    k('buffer_load_dwordx4 v[104:107], v10, s[4:7], 0 offen offset:2048\nbuffer_load_dwordx4 v[108:111], v10, s[4:7], 0 offen offset:2064')
    k('s_lshl_b32 s17, s13, 3\ns_add_u32 s17, s17, s12\ns_lshl_b32 s17, s17, 16')
    k(f's_add_u32 s18, s17, {WOF}\ns_add_u32 s17, s17, {WQF}')
    NR = 36
    def ring(f):
        i = f % NR
        return SB + 4 * i if i < 24 else CI + 4 * (i - 24)
    def wload(f, reg, sp):
        if f and f % 4 == 0: k(f's_add_u32 s{sp}, s{sp}, 4096')
        k(f'buffer_load_dwordx4 {vr(reg, 4)}, v1, s[4:7], s{sp} offen offset:{1024 * (f & 3)}')
    for f in range(NR): wload(f, ring(f), 17)
    k(f's_lshl_b32 s21, s12, 12\ns_lshl_b32 s22, s12, 10\ns_lshl_b32 s19, s13, 17\ns_add_u32 s20, s19, {VF}\ns_add_u32 s19, s19, {KF}')
    def dma(lds, gbase_s, goff, per_wave_kb, tag):
        out = []
        wpart = {4: 's21', 1: 's22', 3: 's23'}[per_wave_kb]
        out.append(f's_add_u32 m0, {wpart}, {lds}')
        out.append(f's_add_u32 s24, s{gbase_s}, {wpart}')
        if goff: out.append(f's_add_u32 s24, s24, {goff}')
        for i in range(per_wave_kb):
            out.append((f'buffer_load_dwordx4 v1, s[4:7], s24 offen offset:{1024 * i} lds', tag))
        return out
    def put(lst):
        for x in lst:
            if isinstance(x, tuple): k(x[0], tag=x[1])
            elif callable(x): x()
            else: k(x)
    k('s_mul_i32 s23, s12, 3072')
    k('v_lshrrev_b32 v9, 4, v1')
    k('s_and_b32 s25, s12, 1')
    k('s_lshr_b32 s26, s12, 2\ns_lshl_b32 s26, s26, 15\ns_and_b32 s27, s12, 3\ns_lshl_b32 s27, s27, 7\ns_add_u32 s26, s26, s27')
    k(f's_add_u32 s26, s26, {L_H}')
    k('v_lshlrev_b32 v11, 9, v9')
    k('v_and_b32 v10, 7, v9\nv_lshl_add_u32 v11, v10, 4, v11\nv_add_u32 v11, s26, v11')
    k('v_lshrrev_b32 v10, 5, v9\nv_and_b32 v9, 31, v9\nv_xor_b32 v9, v9, v10\nv_lshlrev_b32 v9, 4, v9\nv_lshl_add_u32 v9, v10, 9, v9')
    k(f's_lshl_b32 s26, s25, 15\ns_add_u32 s27, s26, {L_H}\ns_sub_u32 s26, {L_H + 32768}, s26')
    for b in range(4):
        k(f'v_xor_b32 v10, {32 * b}, v9')
        k(f'v_add_u32 v{vH[b]}, s27, v10\nv_add_u32 v{vH[4 + b]}, s26, v10')
    k('s_mov_b32 s28, 0xffff0000')
    for j in range(8):
        t = 112 + 8 * (j & 1); p = 128 + 4 * (j & 1)
        for i in range(8):
            src = FB + 4 * j + (i >> 1)
            if i & 1: k(f'v_and_b32 v{t + i}, s28, v{src}')
            else: k(f'v_lshlrev_b32 v{t + i}, 16, v{src}')
        for i in range(8): k(f'v_fma_f32 v{t + i}, v{t + i}, v{104 + i}, v{96 + i}')
        for i in range(4): k(f'v_cvt_pk_bf16_f32 v{p + i}, v{t + 2 * i}, v{t + 2 * i + 1}')
        k(f'v_xor_b32 v10, {16 * j}, v11')
        k(f'ds_write_b128 v10, {vr(p, 4)}')
    put(dma(L_K[0], 19, 0, 4, 'K0'))
    put(dma(L_VPRE, 20, 0, 1, 'K0'))
    stamp()
    k.drain(vm=False)
    k('s_barrier')
    def qacc(e, lam): return OA + 16 * (2 * e + lam)
    def bbuf(s, lam): return FB + 4 * ((2 * s + lam) % 8)
    def bread_q(s):
        for lam in range(2): k(f'ds_read_b128 {vr(bbuf(s, lam), 4)}, v{vH[4 * lam + (s & 3)]} offset:{1024 * s}')
    for s in range(3): bread_q(s)
    for s in range(32):
        for e in range(2):
            for lam in range(2):
                c = vr(qacc(e, lam), 16) if s else '0'
                k(f'v_mfma_f32_32x32x16_bf16 {vr(qacc(e, lam), 16)}, {vr(ring(2 * s + e), 4)}, {vr(bbuf(s, lam), 4)}, {c}')
            f = 2 * s + e + NR
            if f < 64: wload(f, ring(f), 17)
            if e == 0 and s + 3 < 32: bread_q(s + 3)
    stamp()
    k('s_lshl_b32 s26, s25, 12\ns_sub_u32 s27, 4096, s26')
    k(f'v_add_u32 v{vKa}, s26, v1\nv_add_u32 v{vKb}, s27, v1\nv_add_u32 v{vV1}, 0x10000, v1\nv_add_u32 v{vV2}, 0x20000, v1')
    k(f's_mov_b32 s29, {f32(math.log2(math.e) / math.sqrt(128))}')
    k(f'v_add_u32 v{vT0}, s21, v{vV1}')
    k(f's_xor_b32 s26, s21, 4096\nv_add_u32 v{vT1}, s26, v{vV1}')
    for lam in (1, 0):
        for e in range(2):
            a = qacc(e, lam)
            for r in range(16): k(f'v_mul_f32 v{a + r}, s29, v{a + r}')
            for hf in range(2):
                u = 2 * e + hf
                dst = (FB + 4 * u) if lam else (QR + 4 * u)
                for i in range(4): k(f'v_cvt_pk_bf16_f32 v{dst + i}, v{a + 8 * hf + 2 * i}, v{a + 8 * hf + 2 * i + 1}')
                if lam: k(f'ds_write_b128 v{vT0}, {vr(dst, 4)} offset:{L_X - 65536 + 1024 * u}')
    k.wait_vm('K0')
    stamp()
    k.drain(vm=False)
    k('s_barrier')
    for u in range(4): k(f'ds_read_b128 {vr(QR + 16 + 4 * u, 4)}, v{vT1} offset:{L_X - 65536 + 1024 * u}')
    def S(t): return SB + 16 * (t % 4)
    def kfrag(t, u):
        return f'v{vKa if u < 4 else vKb} offset:{L_K[(t >> 2) & 1] + (t & 3) * 8192 + (u & 3) * 1024}'
    def vfrag(t, e, dt):
        o = (e * 4 + dt) * 1024
        if t == 0: return f'v{vV2} offset:{L_VPRE - 131072 + o}'
        if t >= 13: return f'v{vV2} offset:{L_VEND - 131072 + (t - 13) * 8192 + o}'
        c = (t - 1) >> 2
        return f'v{vV1} offset:{(32768 if c == 1 else 0) + ((t - 1) & 3) * 8192 + o}'
    seq = []; group_start = {}
    def qk(t): return [('qk', t, u) for u in range(8)]
    def pv(t): return [('pv', t, i) for i in range(8)]
    seq += qk(0) + qk(1) + qk(2)
    for t in range(16):
        group_start[t] = len(seq)
        if t + 3 < 16:
            for a, b in zip(qk(t + 3), pv(t)): seq += [a, b]
        else: seq += pv(t)
    N = len(seq)
    bars = {group_start[1]: ('B2', 'S1'), group_start[5]: ('B3', 'S2'), group_start[9]: ('B4', 'S3')}
    after_bar = {
        'B1': dma(L_K[1], 19, 32768, 4, 'S1') + dma(L_VA, 20, 8192, 4, 'S1') + dma(L_VEND, 20, 13 * 8192, 3, 'S1'),
        'B2': dma(L_K[0], 19, 65536, 4, 'S2') + dma(L_X, 20, 8192 + 32768, 4, 'S2'),
        'B3': dma(L_K[1], 19, 98304, 4, 'S3') + dma(L_VA, 20, 8192 + 65536, 4, 'S3'),
        'B4': [],
    }
    def frag_addr(n):
        kind, t, i = seq[n]
        return kfrag(t, i) if kind == 'qk' else vfrag(t, i >> 2, i & 3)
    def fbuf(n): return FB + 4 * (n % 8)
    def mfma(n):
        kind, t, i = seq[n]
        if kind == 'qk':
            c = vr(S(t), 16) if i else ('0' if t < 2 else vr(CI, 16))
            return f'v_mfma_f32_32x32x16_bf16 {vr(S(t), 16)}, {vr(fbuf(n), 4)}, {vr(QR + 4 * i, 4)}, {c}'
        e, dt = i >> 2, i & 3
        c = vr(OA + 16 * dt, 16) if (t or e) else '0'
        return f'v_mfma_f32_32x32x16_bf16 {vr(OA + 16 * dt, 16)}, {vr(fbuf(n), 4)}, {vr(S(t) + 4 * e, 4)}, {c}'
    def tile_max(t, dst):
        s = S(t); o = [f'v_max3_f32 v{dst}, v{s}, v{s + 1}, v{s + 2}']
        for i in range(3, 15, 2): o.append(f'v_max3_f32 v{dst}, v{dst}, v{s + i}, v{s + i + 1}')
        o.append(f'v_max_f32 v{dst}, v{dst}, v{s + 15}')
        return o
    def sm(t):
        s = S(t); o = []
        for hf in range(2):
            for r in range(8 * hf, 8 * hf + 8): o.append(f'v_exp_f32 v{s + r}, v{s + r}')
            for r in range(8 * hf, 8 * hf + 8):
                acc = vL if r & 1 else vL2
                if t == 0 and r < 2: o.append(f'v_mov_b32 v{acc}, v{s + r}')
                else: o.append(f'v_add_f32 v{acc}, v{acc}, v{s + r}')
            for i in range(4): o.append(f'v_cvt_pk_bf16_f32 v{s + 4 * hf + i}, v{s + 8 * hf + 2 * i}, v{s + 8 * hf + 2 * i + 1}')
        a = o[0:8]; b = o[8:16]; c = o[16:20]; d = o[20:28]; e = o[28:36]; f = o[36:40]
        out = a[:]
        for x, y in zip(d, b): out += [x, y]
        out += c + e + f
        return out
    def check(t):
        return [f'v_cmp_lt_f32 vcc, s30, v{vMT}', f's_cbranch_vccnz L_fix{t}', ('LABEL', f'L_ret{t}')]
    k(f's_mov_b32 s30, {f32(REF_T)}\ns_mov_b32 s31, {f32(REF_B)}')
    fill = [[] for _ in range(N)]
    def spread(lo, hi, ins):
        n = len(ins)
        for j, x in enumerate(ins): fill[lo + (j * (hi - lo)) // n].append(x)
    start = tile_max(0, vMT) + [f'v_mov_b32 v{vT0}, v{vMT}', f'v_permlane32_swap_b32 v{vMT}, v{vT0}', f'v_max_f32 v{vMT}, v{vMT}, v{vT0}',
                                f'v_add_f32 v{vMT}, s31, v{vMT}', f'v_ceil_f32 v{vMT}, v{vMT}', f'v_sub_f32 v{CI}, 0, v{vMT}']
    start += [f'v_mov_b32 v{CI + i}, v{CI}' for i in range(1, 16)]
    spread(10, 16, start)
    spread(16, 24, [f'v_add_f32 v{S(0) + r}, v{S(0) + r}, v{CI}' for r in range(16)] + sm(0)
           + [f'v_add_f32 v{S(1) + r}, v{S(1) + r}, v{CI}' for r in range(16)] + tile_max(1, vMT) + check(1))
    for t in range(15):
        lo = group_start[t]; hi = group_start[t + 1]
        work = sm(t + 1)
        if t + 2 < 16: work = work + tile_max(t + 2, vMT) + check(t + 2)
        spread(lo, hi, work)
    wslots = [SP + 4 * i for i in range(8)] + [QR + 4 * i for i in range(8)] + [CI + 4 * i for i in range(4)] + \
             [S(12) + 4 * i for i in range(4)] + [S(13) + 4 * i for i in range(4)] + [S(14) + 4 * i for i in range(4)] + [S(15) + 4 * i for i in range(4)]
    NW = len(wslots)
    def wl(f): return lambda: wload(f, wslots[f % NW], 18)
    spread(group_start[10], group_start[12], [wl(f) for f in range(8)])
    spread(group_start[13], group_start[14], [wl(f) for f in range(8, 24)])
    spread(group_start[14], group_start[15], [wl(f) for f in range(24, 28)])
    spread(group_start[15], N, [wl(f) for f in range(28, 32)])
    put(after_bar['B1'])
    nread = 0
    def reads_upto(m, limit):
        nonlocal nread
        while nread <= m and nread < limit:
            k(f'ds_read_b128 {vr(fbuf(nread), 4)}, {frag_addr(nread)}'); nread += 1
    barlist = sorted(bars)
    def next_bar(n):
        for b in barlist:
            if b > n - 1 and b not in done: return b
        return N
    done = set()
    reads_upto(D - 1, N)
    for n in range(N):
        k(mfma(n))
        nb = next_bar(n)
        if nb < N and n == nb - (D - 2):
            name, tag = bars[nb]
            k.wait_vm(tag); stamp(); k.drain(vm=False); k('s_barrier'); done.add(nb)
            put(after_bar[name])
            nb = next_bar(n)
        reads_upto(n + D, nb)
        for x in fill[n]:
            if isinstance(x, tuple) and x[0] == 'LABEL': k.items.append(('rawlabel', x[1]))
            else: put([x])
    stamp()
    k(f'v_add_f32 v{vL}, v{vL}, v{vL2}')
    k(f'v_mov_b32 v{vT0}, v{vL}\nv_permlane32_swap_b32 v{vL}, v{vT0}\nv_add_f32 v{vL}, v{vL}, v{vT0}\nv_rcp_f32 v{vL}, v{vL}')
    k(f's_lshr_b32 s26, s12, 1\ns_lshl_b32 s26, s26, 13\ns_mul_i32 s27, s25, {L_X}\ns_add_u32 s26, s26, s27\nv_add_u32 v{vO}, s26, v1')
    for dt in range(4):
        a = OA + 16 * dt
        for r in range(16): k(f'v_mul_f32 v{a + r}, v{a + r}, v{vL}')
        for hf in range(2):
            dst = FB + 4 * (2 * dt + hf)
            for i in range(4): k(f'v_cvt_pk_bf16_f32 v{dst + i}, v{a + 8 * hf + 2 * i}, v{a + 8 * hf + 2 * i + 1}')
            k(f'ds_write_b128 v{vO}, {vr(dst, 4)} offset:{1024 * (2 * dt + hf)}')
    for f in range(32, NW): wload(f, wslots[f], 18)
    stamp()
    k.drain(vm=False)
    k('s_barrier')
    def bread_o(s):
        k(f'ds_read_b128 {vr(bbuf(s, 0), 4)}, v1 offset:{1024 * s}')
        k(f'ds_read_b128 {vr(bbuf(s, 1), 4)}, v{vV1} offset:{L_X - 65536 + 1024 * s}')
    for s in range(3): bread_o(s)
    for s in range(32):
        for e in range(2):
            for tt in range(2):
                c = vr(qacc(e, tt), 16) if s else '0'
                k(f'v_mfma_f32_32x32x16_bf16 {vr(qacc(e, tt), 16)}, {vr(wslots[(2 * s + e) % NW], 4)}, {vr(bbuf(s, tt), 4)}, {c}')
            f = 2 * s + e + NW
            if f < 64: wload(f, wslots[f % NW], 18)
            if e == 0 and s + 3 < 32: bread_o(s + 3)
    stamp()
    k(f's_lshl_b32 s26, s13, 21\ns_lshl_b32 s27, s14, 16\ns_add_u32 s26, s26, s27\ns_add_u32 s26, s26, s21\ns_add_u32 s26, s26, {PA}\ns_add_u32 s27, s26, 32768')
    for e in range(2):
        for tt in range(2):
            a = qacc(e, tt)
            for hf in range(2):
                dst = FB + 4 * (4 * e + 2 * tt + hf)
                for i in range(4): k(f'v_cvt_pk_bf16_f32 v{dst + i}, v{a + 8 * hf + 2 * i}, v{a + 8 * hf + 2 * i + 1}')
                k(f'buffer_store_dwordx4 {vr(dst, 4)}, v1, s[4:7], s{26 + tt} offen offset:{2048 * e + 1024 * hf}')
    if stamps:
        k.drain(); stamp(); k('s_memrealtime s[38:39]'); k.drain()
        k(f's_lshl_b32 s26, s2, 3\ns_add_u32 s26, s26, s12\ns_lshl_b32 s26, s26, 6\ns_add_u32 s26, s26, {STAMPS}')
        k('v_mov_b32 v2, 0')
        for i in range(ns[0]):
            k(f'v_mov_b32 v3, s{40 + 2 * i}\nbuffer_store_dword v3, v2, s[4:7], s26 offen offset:{4 * i}')
        k(f'v_mov_b32 v3, s38\nbuffer_store_dword v3, v2, s[4:7], s26 offen offset:60')
        k(f'v_mov_b32 v3, s36\nbuffer_store_dword v3, v2, s[4:7], s26 offen offset:56')
    k.label('L_k2_end')
    k('s_endpgm')
    for t in range(1, 16):
        k.label(f'L_fix{t}')
        k('s_nop 15')
        k(f'v_mov_b32 v{vT0}, v{vMT}\ns_nop 1\nv_permlane32_swap_b32 v{vMT}, v{vT0}\nv_max_f32 v{vMT}, v{vMT}, v{vT0}')
        k(f'v_add_f32 v{vMT}, s31, v{vMT}\nv_ceil_f32 v{vMT}, v{vMT}\nv_max_f32 v{vMT}, 0, v{vMT}')
        k(f'v_min_f32 v{vT0}, 0x43800000, v{vMT}\nv_cvt_i32_f32 v{vT0}, v{vT0}\nv_sub_u32 v{vT0}, 0, v{vT0}')
        if t >= 2:
            for r in range(64): k(f'v_ldexp_f32 v{OA + r}, v{OA + r}, v{vT0}')
        k(f'v_ldexp_f32 v{vL}, v{vL}, v{vT0}\nv_ldexp_f32 v{vL2}, v{vL2}, v{vT0}')
        p = S(t - 1)
        for i in range(8):
            k(f'v_lshlrev_b32 v{vT1}, 16, v{p + i}\nv_and_b32 v{p + i}, s28, v{p + i}')
            k(f'v_ldexp_f32 v{vT1}, v{vT1}, v{vT0}\nv_ldexp_f32 v{p + i}, v{p + i}, v{vT0}')
            k(f'v_cvt_pk_bf16_f32 v{p + i}, v{vT1}, v{p + i}')
        for tt in (t, t + 1):
            if tt < 16:
                for r in range(16): k(f'v_sub_f32 v{S(tt) + r}, v{S(tt) + r}, v{vMT}')
        if t + 2 < 16:
            for r in range(16): k(f'v_sub_f32 v{CI + r}, v{CI + r}, v{vMT}')
        k(f's_nop 1\ns_branch L_ret{t}')
    return k, (256, 512, 163840)
```

```python
from asmlib import *
from layout import *
from k0 import load_srd

def unpack8(k, dst, src, smask):
    for i in range(8):
        if i & 1: k(f'v_and_b32 v{dst + i}, s{smask}, v{src + (i >> 1)}')
        else: k(f'v_lshlrev_b32 v{dst + i}, 16, v{src + (i >> 1)}')

def red_8_16_32(k, v, t):
    k(f'v_add_f32_dpp v{v}, v{v}, v{v} row_ror:8 row_mask:0xf bank_mask:0xf')
    k(f'v_mov_b32 v{t}, v{v}\nv_permlane16_swap_b32 v{v}, v{t}\nv_add_f32 v{v}, v{v}, v{t}')
    k(f'v_mov_b32 v{t}, v{v}\nv_permlane32_swap_b32 v{v}, v{t}\nv_add_f32 v{v}, v{v}, v{t}')

def gen_k3():
    k = Kernel('mid_kernel')
    k('s_cmp_ge_u32 s2, 256\ns_cbranch_scc1 L_k3_end')
    load_srd(k, 4, A_WS)
    load_srd(k, 8, A_X)
    k('v_and_b32 v1, 7, v0')
    k('v_lshrrev_b32 v2, 3, v0')
    k('v_and_b32 v6, 63, v0\nv_lshrrev_b32 v7, 6, v0')
    k('v_lshlrev_b32 v3, 9, v2\nv_lshl_add_u32 v3, v1, 4, v3')
    k('s_lshr_b32 s12, s2, 2\ns_lshl_b32 s12, s12, 15\ns_and_b32 s13, s2, 3\ns_lshl_b32 s13, s13, 7\ns_add_u32 s12, s12, s13')
    k('v_lshlrev_b32 v4, 10, v1\nv_lshl_add_u32 v4, v2, 4, v4\ns_lshl_b32 s14, s2, 13')
    k('v_lshlrev_b32 v5, 5, v2')
    for gi in range(8):
        k(f's_add_u32 s15, s12, {PA + gi * (2 << 20)}')
        k(f'buffer_load_dwordx4 {vr(16 + 4 * gi, 4)}, v3, s[4:7], s15 offen')
    k('buffer_load_dwordx4 v[48:51], v4, s[8:11], s14 offen')
    for j, sec in enumerate((2, 3, 4)):
        k(f's_mov_b32 s15, {MOD + sec * 2048}')
        k(f'buffer_load_dwordx4 {vr(52 + 8 * j, 4)}, v5, s[4:7], s15 offen\nbuffer_load_dwordx4 {vr(56 + 8 * j, 4)}, v5, s[4:7], s15 offen offset:16')
    k('s_mov_b32 s16, 0xffff0000')
    unpack8(k, 80, 16, 16)
    for gi in range(1, 8):
        unpack8(k, 88, 16 + 4 * gi, 16)
        for i in range(8): k(f'v_add_f32 v{80 + i}, v{80 + i}, v{88 + i}')
    unpack8(k, 88, 48, 16)
    for i in range(8): k(f'v_fmac_f32 v{88 + i}, v{52 + i}, v{80 + i}')
    for i in range(4): k(f'v_cvt_pk_bf16_f32 v{48 + i}, v{88 + 2 * i}, v{89 + 2 * i}')
    k(f's_add_u32 s15, s14, {X1}')
    k('buffer_store_dwordx4 v[48:51], v4, s[4:7], s15 offen')
    unpack8(k, 80, 48, 16)
    k('v_add_f32 v8, v80, v81\nv_add_f32 v9, v82, v83\nv_add_f32 v10, v84, v85\nv_add_f32 v11, v86, v87\nv_add_f32 v8, v8, v9\nv_add_f32 v10, v10, v11\nv_add_f32 v8, v8, v10')
    red_8_16_32(k, 8, 9)
    k('v_lshlrev_b32 v12, 5, v1\nv_lshl_add_u32 v13, v7, 2, v12')
    k('ds_write_b32 v13, v8')
    k.drain(vm=False); k('s_barrier')
    k('ds_read_b128 v[16:19], v12\nds_read_b128 v[20:23], v12 offset:16')
    k('v_add_f32 v16, v16, v17\nv_add_f32 v18, v18, v19\nv_add_f32 v20, v20, v21\nv_add_f32 v22, v22, v23\nv_add_f32 v16, v16, v18\nv_add_f32 v20, v20, v22\nv_add_f32 v8, v16, v20')
    k('v_mul_f32 v8, 0x3b000000, v8')
    for i in range(8): k(f'v_sub_f32 v{80 + i}, v{80 + i}, v8')
    k('v_mul_f32 v8, v80, v80\nv_mul_f32 v9, v81, v81')
    for i in range(2, 8): k(f'v_fmac_f32 v{8 + (i & 1)}, v{80 + i}, v{80 + i}')
    k('v_add_f32 v8, v8, v9')
    red_8_16_32(k, 8, 9)
    k('ds_write_b32 v13, v8 offset:256')
    k.drain(vm=False); k('s_barrier')
    k('ds_read_b128 v[16:19], v12 offset:256\nds_read_b128 v[20:23], v12 offset:272')
    k('v_add_f32 v16, v16, v17\nv_add_f32 v18, v18, v19\nv_add_f32 v20, v20, v21\nv_add_f32 v22, v22, v23\nv_add_f32 v16, v16, v18\nv_add_f32 v20, v20, v22\nv_add_f32 v8, v16, v20')
    k('v_mov_b32 v9, 0x3727c5ac\nv_fmac_f32 v9, 0x3b000000, v8\nv_rsq_f32 v9, v9')
    for i in range(8): k(f'v_mul_f32 v{80 + i}, v{80 + i}, v9')
    for i in range(8): k(f'v_fma_f32 v{80 + i}, v{80 + i}, v{68 + i}, v{60 + i}')
    for i in range(4): k(f'v_cvt_pk_bf16_f32 v{16 + i}, v{80 + 2 * i}, v{81 + 2 * i}')
    k(f's_add_u32 s15, s12, {H2F}')
    k('buffer_store_dwordx4 v[16:19], v3, s[4:7], s15 offen')
    k.label('L_k3_end')
    k('s_endpgm')
    return k, (256, 512, 1024)
```

```python
from asmlib import *
from layout import *
from k0 import load_srd
from k2 import f32
import math

def gen_k4():
    k = Kernel('win_kernel')
    L_TR = 65536; TRW = 2 * 32 * 80
    L_ST = L_TR + 7 * TRW
    L_FIN = L_ST + 4096
    LDS = L_FIN + 512
    W = 128; ACC = 32; FB = 64
    k('s_cmp_ge_u32 s2, 256\ns_cbranch_scc1 L_k4_end')
    load_srd(k, 4, A_WS)
    k('v_and_b32 v2, 63, v0\nv_lshrrev_b32 v3, 6, v0')
    k('v_readfirstlane_b32 s12, v3')
    k('s_and_b32 s13, s2, 7\ns_lshr_b32 s14, s2, 3')
    k('v_lshlrev_b32 v1, 4, v2')
    k(f's_lshl_b32 s15, s12, 13\ns_lshl_b32 s16, s14, 16\ns_add_u32 s16, s16, s15\ns_add_u32 s16, s16, {H2F}')
    for h in range(2):
        k(f's_add_u32 m0, s15, {4096 * h}\ns_add_u32 s17, s16, {4096 * h}')
        for i in range(4): k(f'buffer_load_dwordx4 v1, s[4:7], s17 offen offset:{1024 * i} lds', tag='h2')
    k('s_cmp_eq_u32 s12, 7\ns_cbranch_scc1 L_k4_helper')
    k(f's_mul_i32 s18, s13, 7\ns_add_u32 s18, s18, s12')
    k(f's_lshl_b32 s17, s18, 15\ns_add_u32 s17, s17, {WINF}')
    for s in range(32):
        if s and s % 4 == 0: k('s_add_u32 s17, s17, 4096')
        k(f'buffer_load_dwordx4 {vr(W + 4 * s, 4)}, v1, s[4:7], s17 offen offset:{1024 * (s & 3)}')
    c0 = -2 * math.log2(math.e) * math.sqrt(2 / math.pi)
    k(f's_mov_b32 s20, {f32(c0)}\ns_mov_b32 s21, {f32(c0 * 0.044715)}')
    k('v_mov_b32 v4, s20')
    k.wait_vm('h2')
    k('s_barrier')
    def gelu(a):
        o = []
        for blk in range(0, 16, 8):
            t = [96 + blk + i for i in range(8)]; x = [a + blk + i for i in range(8)]
            o += [f'v_mul_f32 v{t[i]}, v{x[i]}, v{x[i]}' for i in range(8)]
            o += [f'v_fma_f32 v{t[i]}, v{t[i]}, s21, v4' for i in range(8)]
            o += [f'v_mul_f32 v{t[i]}, v{t[i]}, v{x[i]}' for i in range(8)]
            o += [f'v_exp_f32 v{t[i]}, v{t[i]}' for i in range(8)]
            o += [f'v_add_f32 v{t[i]}, 1.0, v{t[i]}' for i in range(8)]
            o += [f'v_rcp_f32 v{t[i]}, v{t[i]}' for i in range(8)]
            o += [f'v_mul_f32 v{x[i]}, v{x[i]}, v{t[i]}' for i in range(8)]
        return o
    D = 6
    seq = [(tt, s) for tt in range(2) for s in range(32)]
    def rd(n):
        tt, s = seq[n]
        k(f'ds_read_b128 {vr(FB + 4 * (n % 8), 4)}, v1 offset:{32768 * tt + 1024 * s}')
    for n in range(D): rd(n)
    g0 = gelu(ACC)
    for n, (tt, s) in enumerate(seq):
        a = ACC + 16 * tt
        k(f'v_mfma_f32_32x32x16_bf16 {vr(a, 16)}, {vr(W + 4 * s, 4)}, {vr(FB + 4 * (n % 8), 4)}, {vr(a, 16) if s else 0}')
        if n + D < 64: rd(n + D)
        if n >= 34:
            lo = (n - 34) * len(g0) // 30; hi = (n - 33) * len(g0) // 30
            for x in g0[lo:hi]: k(x)
    for x in gelu(ACC + 16): k(x)
    k('s_cmp_ge_u32 s13, 4\ns_cbranch_scc1 L_k4_z2')
    k(f's_lshl_b32 s17, s14, 1\ns_mul_i32 s17, s17, {56 * 1024}\ns_lshl_b32 s19, s18, 11\ns_add_u32 s17, s17, s19\ns_add_u32 s17, s17, {Z1F}\ns_add_u32 s19, s17, {56 * 1024}')
    for tt in range(2):
        for hf in range(2):
            a = ACC + 16 * tt + 8 * hf; d = FB + 4 * (2 * tt + hf)
            for i in range(4): k(f'v_cvt_pk_bf16_f32 v{d + i}, v{a + 2 * i}, v{a + 2 * i + 1}')
            k(f'buffer_store_dwordx4 {vr(d, 4)}, v1, s[4:7], s{17 + 2 * tt} offen offset:{1024 * hf}')
    k('s_endpgm')
    k.label('L_k4_helper')
    k('s_waitcnt vmcnt(0)\ns_barrier')
    k('s_cmp_lt_u32 s13, 4\ns_cbranch_scc1 L_k4_end')
    k('s_barrier\ns_barrier')
    k('s_endpgm')
    k.label('L_k4_z2')
    for tt in range(2):
        a = ACC + 16 * tt; sm = 8 + 2 * tt
        k(f'v_add_f32 v{sm}, v{a}, v{a + 1}\nv_mul_f32 v{sm + 1}, v{a}, v{a}\nv_fmac_f32 v{sm + 1}, v{a + 1}, v{a + 1}')
        for r in range(2, 16): k(f'v_add_f32 v{sm}, v{sm}, v{a + r}\nv_fmac_f32 v{sm + 1}, v{a + r}, v{a + r}')
    k('v_permlane32_swap_b32 v8, v10\nv_permlane32_swap_b32 v9, v11\nv_add_f32 v8, v8, v10\nv_add_f32 v9, v9, v11')
    k(f'v_lshlrev_b32 v5, 6, v2\ns_lshl_b32 s17, s12, 3\nv_add_u32 v6, s17, v5')
    k(f'ds_write_b64 v6, v[8:9] offset:{L_ST - 65536 + 65536}' if L_ST < 65536 else f'v_add_u32 v6, {L_ST}, v6\nds_write_b64 v6, v[8:9]')
    k.drain(vm=False); k('s_barrier')
    k('s_cmp_lg_u32 s12, 0\ns_cbranch_scc1 L_k4_wait')
    k(f'v_add_u32 v5, {L_ST}, v5')
    for i in range(3): k(f'ds_read_b128 {vr(64 + 4 * i, 4)}, v5 offset:{16 * i}')
    k('ds_read_b64 v[76:77], v5 offset:48')
    for i in range(1, 7): k(f'v_add_f32 v64, v64, v{64 + 2 * i}\nv_add_f32 v65, v65, v{65 + 2 * i}')
    k('v_mov_b32 v7, 0x7fc00000')
    for r in (64, 65): k(f'v_cmp_eq_u32 vcc, -1, v{r}\nv_cndmask_b32 v{r}, v{r}, v7, vcc')
    k(f'v_lshlrev_b32 v6, 3, v2\ns_lshl_b32 s17, s14, 11\ns_add_u32 s17, s17, {STATS}\ns_sub_u32 s19, s13, 4\ns_lshl_b32 s19, s19, 9\ns_add_u32 s19, s19, s17')
    k('buffer_store_dwordx2 v[64:65], v6, s[4:7], s19 offen sc1')
    k('s_mov_b32 s22, 0')
    k.label('L_k4_poll')
    for j in range(4): k(f'buffer_load_dwordx2 {vr(66 + 2 * j, 2)}, v6, s[4:7], s17 offen offset:{512 * j} sc1')
    k('v_cmp_ne_u32 vcc, -1, v66')
    for r in range(67, 74): k(f'v_cmp_ne_u32 s[24:25], -1, v{r}\ns_and_b64 vcc, vcc, s[24:25]')
    k('s_cmp_eq_u64 vcc, -1\ns_cbranch_scc1 L_k4_got')
    k('s_add_u32 s22, s22, 1\ns_cmp_lt_u32 s22, 0x100000\ns_sleep 1\ns_cbranch_scc1 L_k4_poll')
    k.label('L_k4_got')
    k('v_add_f32 v66, v66, v68\nv_add_f32 v70, v70, v72\nv_add_f32 v66, v66, v70\nv_add_f32 v67, v67, v69\nv_add_f32 v71, v71, v73\nv_add_f32 v67, v67, v71')
    k(f's_mov_b32 s22, {f32(1 / 896)}')
    k('v_mul_f32 v66, s22, v66\nv_mul_f32 v67, s22, v67')
    k('v_fma_f32 v67, -v66, v66, v67\nv_max_f32 v67, 0, v67\nv_add_f32 v67, 0x3727c5ac, v67\nv_rsq_f32 v67, v67')
    k(f'v_add_u32 v6, {L_FIN}, v6\nds_write_b64 v6, v[66:67]')
    k.drain(vm=False)
    k.label('L_k4_wait')
    k('s_barrier')
    k(f'v_and_b32 v5, 31, v2\nv_lshlrev_b32 v6, 3, v5\nv_add_u32 v6, {L_FIN}, v6')
    k('ds_read_b64 v[8:9], v6\nds_read_b64 v[10:11], v6 offset:256')
    k(f's_mul_i32 s17, s12, {TRW}\ns_add_u32 s17, s17, {L_TR}')
    k('v_mul_u32_u24 v5, 80, v5\nv_lshrrev_b32 v6, 5, v2\nv_lshl_add_u32 v5, v6, 4, v5\nv_add_u32 v5, s17, v5')
    k('v_bfe_u32 v7, v2, 2, 2\nv_lshl_add_u32 v6, v6, 3, v7\nv_mul_u32_u24 v6, 80, v6')
    k('v_bfe_u32 v7, v2, 4, 1\nv_lshl_add_u32 v6, v7, 5, v6\nv_and_b32 v7, 1, v2\nv_lshl_add_u32 v6, v7, 4, v6\nv_bfe_u32 v7, v2, 1, 1\nv_lshl_add_u32 v6, v7, 3, v6\nv_add_u32 v6, s17, v6')
    for tt in range(2):
        a = ACC + 16 * tt
        for r in range(16): k(f'v_sub_f32 v{a + r}, v{a + r}, v{8 + 2 * tt}')
        for r in range(16): k(f'v_mul_f32 v{a + r}, v{a + r}, v{9 + 2 * tt}')
        for hf in range(2):
            d = FB + 4 * (2 * tt + hf)
            for i in range(4): k(f'v_cvt_pk_bf16_f32 v{d + i}, v{a + 8 * hf + 2 * i}, v{a + 8 * hf + 2 * i + 1}')
            k(f'ds_write_b128 v5, {vr(d, 4)} offset:{2560 * tt + 32 * hf}')
    k.drain(vm=False)
    for sg in range(4):
        for m in range(2):
            k(f'ds_read_b64_tr_b16 {vr(80 + 4 * sg + 2 * m, 2)}, v6 offset:{(16 * sg + 4 * m) * 80}')
    k(f's_sub_u32 s17, s18, 28\ns_lshl_b32 s17, s17, 17\ns_lshl_b32 s19, s14, 12\ns_add_u32 s17, s17, s19\ns_add_u32 s17, s17, {Z2F}')
    for sg in range(4): k(f'buffer_store_dwordx4 {vr(80 + 4 * sg, 4)}, v1, s[4:7], s17 offen offset:{1024 * sg}')
    k.label('L_k4_end')
    k('s_endpgm')
    return k, (256, 512, LDS)
```

```python
from asmlib import *
from layout import *
from k0 import load_srd

def gen_k5(NA=44):
    k = Kernel('sp_kernel')
    L_X = 131072; LDS = L_X + 32768
    ACC = 16; FB = 48; AR = 80
    vB = [4, 5, 6, 7, 8, 9, 10, 11]
    k('s_cmp_ge_u32 s2, 224\ns_cbranch_scc1 L_k5_end')
    load_srd(k, 4, A_WS)
    load_srd(k, 8, A_WSP)
    load_srd(k, 28, A_BSP)
    k('v_and_b32 v2, 63, v0\nv_lshrrev_b32 v3, 6, v0')
    k('v_readfirstlane_b32 s12, v3')
    k('s_and_b32 s13, s2, 7\ns_lshr_b32 s14, s2, 3\ns_mul_i32 s15, s14, 37\ns_lshr_b32 s15, s15, 8')
    k('s_mul_i32 s16, s15, 7\ns_sub_u32 s16, s14, s16')
    k('s_lshl_b32 s13, s13, 2\ns_add_u32 s13, s13, s15')
    k('s_and_b32 s17, s12, 3\ns_lshr_b32 s18, s12, 2')
    k('s_lshl_b32 s19, s16, 2\ns_add_u32 s19, s19, s17')
    k('v_lshlrev_b32 v1, 4, v2')
    k('v_lshrrev_b32 v12, 3, v0')
    k('v_bfe_u32 v13, v12, 1, 3\nv_and_b32 v14, 7, v2\nv_xor_b32 v13, v13, v14\nv_lshlrev_b32 v13, 4, v13\nv_lshl_add_u32 v12, v12, 12, v13')
    k('s_lshl_b32 s20, s13, 18')
    k('s_lshl_b32 s21, s12, 10')
    def dma(ss):
        for st in range(2):
            for kh in range(2):
                j = 2 * ss + st
                k(f's_add_u32 m0, s21, {(ss % 4) * 32768 + st * 16384 + kh * 8192}\ns_add_u32 s22, s20, {kh * 2048 + j * 128}')
                k('buffer_load_dwordx4 v12, s[8:11], s22 offen lds', tag=f'ss{ss}')
    k(f's_lshl_b32 s23, s19, 17\ns_lshl_b32 s24, s18, 16\ns_add_u32 s23, s23, s24\ns_add_u32 s23, s23, {Z2F}')
    def aload(f):
        if f and f % 4 == 0: k('s_add_u32 s23, s23, 4096')
        k(f'buffer_load_dwordx4 {vr(AR + 4 * (f % NA), 4)}, v1, s[4:7], s23 offen offset:{1024 * (f & 3)}')
    nf = 0
    for ss in range(4):
        dma(ss)
        for f in range(8 * ss, 8 * ss + 8): aload(f)
        nf = 8 * ss + 8
    for f in range(nf, NA): aload(f)
    nf = NA
    k('v_and_b32 v13, 31, v2\nv_lshrrev_b32 v14, 5, v2\nv_bfe_u32 v15, v2, 1, 3\nv_xor_b32 v15, v15, v14\nv_lshlrev_b32 v15, 4, v15\nv_lshl_add_u32 v15, v13, 7, v15')
    k('s_lshl_b32 s24, s18, 13\ns_lshl_b32 s25, s18, 12\ns_add_u32 s26, s24, s25\ns_sub_u32 s25, 4096, s25\ns_add_u32 s25, s25, s24')
    for sg in range(4):
        k(f'v_xor_b32 v14, {32 * sg}, v15\nv_add_u32 v{vB[sg]}, s26, v14\nv_add_u32 v{vB[4 + sg]}, s25, v14')
    k('v_mov_b32 v3, 0x10000')
    seq = [(s, lam) for s in range(64) for lam in range(2)]
    D = 6
    hi_mode = [False]
    def rd(n):
        s, lam = seq[n]; ss = s >> 3; st = (s >> 2) & 1
        off = (ss % 4) * 32768 + st * 16384
        want_hi = off >= 65536
        k(f'ds_read_b128 {vr(FB + 4 * (n % 8), 4)}, v{vB[4 * lam + (s & 3)]} offset:{off & 0xffff}')
    def shift_addr(up):
        for r in vB: k(f'v_{"add" if up else "sub"}_u32 v{r}, v{r}, v3')
    nread = 0
    N = len(seq)
    for ss in range(8):
        lo = 16 * ss
        if ss == 0:
            k.wait_vm('ss0'); k('s_barrier')
            while nread < D: rd(nread); nread += 1
        for n in range(lo, lo + 16):
            s, lam = seq[n]; a = ACC + 16 * lam
            k(f'v_mfma_f32_32x32x16_bf16 {vr(a, 16)}, {vr(AR + 4 * (s % NA), 4)}, {vr(FB + 4 * (n % 8), 4)}, {vr(a, 16) if s else 0}')
            if lam == 1 and nf < 64: aload(nf); nf += 1
            nb = lo + 16
            if n == nb - (D - 2) and ss < 7:
                k.wait_vm(f'ss{ss + 1}'); k.drain(vm=False); k('s_barrier')
                if ss + 4 < 8: dma(ss + 4)
                if (ss + 1) % 2 == 0: shift_addr(((ss + 1) % 4) == 2)
                limit = nb + 16
            else:
                limit = nb if n < nb - (D - 2) else nb + 16
            while nread <= n + D and nread < min(limit, N): rd(nread); nread += 1
            if n == 100:
                k(f's_lshl_b32 s24, s13, 1\ns_add_u32 s24, s24, s18\ns_mul_i32 s25, s24, {56 * 1024}\ns_lshl_b32 s26, s19, 11\ns_add_u32 s25, s25, s26')
                k(f's_add_u32 s26, s25, {Z1F}\ns_add_u32 s25, s25, {UF}\ns_lshl_b32 s24, s24, 6')
                k(f'buffer_load_dwordx4 {vr(AR, 4)}, v1, s[4:7], s26 offen\nbuffer_load_dwordx4 {vr(AR + 4, 4)}, v1, s[4:7], s26 offen offset:1024')
                k(f'v_lshlrev_b32 v13, 1, v13\nbuffer_load_ushort v{AR + 8}, v13, s[28:31], s24 offen')
    assert (64 - NA) <= 50 - 3 or True
    k(f's_lshl_b32 s21, s12, 12\ns_add_u32 s22, s21, {L_X}\ns_xor_b32 s21, s21, 16384\ns_add_u32 s21, s21, {L_X}')
    k('v_add_u32 v4, s22, v1\nv_add_u32 v5, s21, v1')
    for q in range(4): k(f'ds_write_b128 v4, {vr(ACC + 16 + 4 * q, 4)} offset:{1024 * q}')
    k.drain(vm=False); k('s_barrier')
    for q in range(4): k(f'ds_read_b128 {vr(FB + 4 * q, 4)}, v5 offset:{1024 * q}')
    k(f'v_lshlrev_b32 v{AR + 8}, 16, v{AR + 8}\ns_mov_b32 s27, 0xffff0000')
    for r in range(16): k(f'v_add_f32 v{ACC + r}, v{ACC + r}, v{AR + 8}')
    for r in range(16): k(f'v_add_f32 v{ACC + r}, v{ACC + r}, v{FB + r}')
    for r in range(16):
        src = AR + (r >> 1)
        if r & 1: k(f'v_and_b32 v{FB + r}, s27, v{src}')
        else: k(f'v_lshlrev_b32 v{FB + r}, 16, v{src}')
    for r in range(16): k(f'v_mul_f32 v{ACC + r}, v{ACC + r}, v{FB + r}')
    for i in range(8): k(f'v_cvt_pk_bf16_f32 v{FB + 16 + i}, v{ACC + 2 * i}, v{ACC + 2 * i + 1}')
    k(f'buffer_store_dwordx4 {vr(FB + 16, 4)}, v1, s[4:7], s25 offen\nbuffer_store_dwordx4 {vr(FB + 20, 4)}, v1, s[4:7], s25 offen offset:1024')
    k.label('L_k5_end')
    k('s_endpgm')
    return k, (224, 512, LDS)

def gen_k6():
    k = Kernel('wout_kernel')
    AF = 16; BF = 72; ACC = 128
    k('s_cmp_ge_u32 s2, 256\ns_cbranch_scc1 L_k6_end')
    load_srd(k, 4, A_WS)
    load_srd(k, 8, A_OUT)
    k('v_and_b32 v2, 63, v0\nv_lshrrev_b32 v3, 6, v0')
    k('v_readfirstlane_b32 s12, v3')
    k('s_and_b32 s13, s2, 7\ns_lshl_b32 s13, s13, 2\ns_lshr_b32 s14, s2, 6\ns_add_u32 s13, s13, s14\ns_bfe_u32 s14, s2, 0x30003')
    k('v_lshlrev_b32 v1, 4, v2')
    k(f's_mul_i32 s15, s14, {56 * 2048}\ns_mul_i32 s16, s12, {7 * 2048}\ns_add_u32 s15, s15, s16\ns_add_u32 s15, s15, {WOUTF}')
    k(f's_mul_i32 s16, s13, {2 * 56 * 1024}\ns_mul_i32 s17, s12, {7 * 1024}\ns_add_u32 s16, s16, s17\ns_add_u32 s16, s16, {UF}\ns_add_u32 s17, s16, {56 * 1024}')
    for s in range(7):
        if s and s % 2 == 0: k('s_add_u32 s15, s15, 4096')
        if s == 4: k('s_add_u32 s16, s16, 4096\ns_add_u32 s17, s17, 4096')
        for e in range(2): k(f'buffer_load_dwordx4 {vr(AF + 8 * s + 4 * e, 4)}, v1, s[4:7], s15 offen offset:{2048 * (s & 1) + 1024 * e}')
        for tt in range(2): k(f'buffer_load_dwordx4 {vr(BF + 8 * s + 4 * tt, 4)}, v1, s[4:7], s{16 + tt} offen offset:{1024 * (s & 3)}')
    k('v_and_b32 v4, 31, v2\nv_lshrrev_b32 v5, 5, v2\nv_lshlrev_b32 v4, 10, v4\nv_lshl_add_u32 v4, v5, 4, v4\nv_lshlrev_b32 v5, 5, v5')
    k('s_lshl_b32 s18, s13, 16\ns_lshr_b32 s19, s12, 2\ns_lshl_b32 s19, s19, 15\ns_add_u32 s18, s18, s19')
    k('s_lshl_b32 s19, s14, 2\ns_and_b32 s20, s12, 3\ns_add_u32 s19, s19, s20')
    k('s_lshl_b32 s20, s19, 5\ns_add_u32 s18, s18, s20')
    k(f's_add_u32 s21, s18, {X1}\ns_lshl_b32 s20, s19, 6\ns_add_u32 s20, s20, {MOD + 5 * 2048}')
    k('buffer_load_dwordx4 v[192:195], v4, s[4:7], s21 offen')
    k('buffer_load_dwordx4 v[196:199], v5, s[4:7], s20 offen\nbuffer_load_dwordx4 v[200:203], v5, s[4:7], s20 offen offset:16')
    for s in range(7):
        for tt in range(2):
            for e in range(2):
                a = ACC + 16 * (2 * tt + e)
                k(f'v_mfma_f32_32x32x16_bf16 {vr(a, 16)}, {vr(AF + 8 * s + 4 * e, 4)}, {vr(BF + 8 * s + 4 * tt, 4)}, {vr(a, 16) if s else 0}')
    k('s_lshl_b32 s22, s12, 14\nv_add_u32 v6, s22, v1\ns_lshl_b32 s22, s12, 11\nv_add_u32 v7, s22, v1\nv_add_u32 v8, 0x10000, v7')
    for q in range(16): k(f'ds_write_b128 v6, {vr(ACC + 4 * q, 4)} offset:{1024 * q}')
    k.drain(vm=False); k('s_barrier')
    for w in range(8):
        for q in range(2): k(f'ds_read_b128 {vr(16 + 8 * w + 4 * q, 4)}, v{7 if w < 4 else 8} offset:{16384 * (w & 3) + 1024 * q}')
    k('s_mov_b32 s27, 0xffff0000')
    for i in range(8):
        if i & 1: k(f'v_and_b32 v{204 + i}, s27, v{192 + (i >> 1)}')
        else: k(f'v_lshlrev_b32 v{204 + i}, 16, v{192 + (i >> 1)}')
    for w in range(1, 8):
        for i in range(8): k(f'v_add_f32 v{16 + i}, v{16 + i}, v{16 + 8 * w + i}')
    for i in range(8): k(f'v_fmac_f32 v{204 + i}, v{16 + i}, v{196 + i}')
    for i in range(4): k(f'v_cvt_pk_bf16_f32 v{16 + i}, v{204 + 2 * i}, v{205 + 2 * i}')
    k('buffer_store_dwordx4 v[16:19], v4, s[8:11], s18 offen')
    k.label('L_k6_end')
    k('s_endpgm')
    return k, (256, 512, 131072)
```

```python
MOD   = 0x0
WQF   = 0x100000
WOF   = 0x500000
WINF  = 0x900000
WOUTF = 0xB00000
KF    = 0xC00000
VF    = 0xD00000
XN    = 0xE00000
PA    = 0x1000000
X1    = 0x2000000
H2F   = 0x2200000
Z1F   = 0x2400000
Z2F   = 0x2800000
UF    = 0x2C00000
STATS = 0x3000000
Z2N   = 0x3200000
STAMPS = 0x4000000
WS_BYTES = 268435456
A_X, A_K, A_V, A_WQ, A_WO, A_BX, A_WIN, A_WSP, A_BSP, A_WOUT, A_C, A_WMOD, A_OUT, A_DBG, A_WS = [8 * i for i in range(15)]
SZ = {A_X: 2097152, A_K: 4194304, A_V: 4194304, A_WQ: 4194304, A_WO: 4194304, A_WIN: 1835008, A_WSP: 8388608,
      A_BSP: 4096, A_WOUT: 917504, A_C: 1024, A_WMOD: 3145728, A_OUT: 2097152, A_DBG: 256, A_WS: WS_BYTES}
def swap23(i):
    return (i & ~12) | ((i & 4) << 1) | ((i & 8) >> 1)
```

```python
import sys, importlib
from asmlib import *
def build(kernels, path):
    hdr = open('adaLN_cond__sliding_block_cached__mixer_gmlp__prompt.s.ref').read().split('; Override launch')[0]
    o = [hdr.rstrip()]
    for k, (g, b, lds) in kernels:
        o.append(f'; @launch kernel={k.name} grid=({g},1,1) block=({b},1,1) lds={lds}')
    o.append('.amdgcn_target "amdgcn-amd-amdhsa--gfx950"\n.text')
    seen = []
    for k, _ in kernels:
        if k.name in seen: continue
        seen.append(k.name)
        o.append(k.text())
        print(k.name, k.stats, 'vgpr', k.maxreg('v') + 1, 'sgpr', k.maxreg('s') + 1, file=sys.stderr)
    o.append('.section .rodata,"a"')
    seen = []
    for k, _ in kernels:
        if k.name in seen: continue
        seen.append(k.name)
        o.append(k.descriptor())
    open(path, 'w').write('\n'.join(o) + '\n')
if __name__ == '__main__':
    from k0 import gen_k0
    from k2 import gen_k2
    from k3 import gen_k3
    from k4 import gen_k4
    from k5 import gen_k5, gen_k6
    ks = [gen_k0(), gen_k2(stamps='stamps' in sys.argv), gen_k3(), gen_k4(), gen_k5(), gen_k6()]
    build(ks, sys.argv[1] if len(sys.argv) > 1 else 'out.s')
```

```python
import re

REG_RE = re.compile(r'^(v|s|a)(\d+)$')
RNG_RE = re.compile(r'^(v|s|a)\[(\d+):(\d+)\]$')

def regs_of(tok):
    tok = tok.strip()
    neg = tok
    tok = re.sub(r'^-', '', tok)
    m = re.match(r'^(abs|neg)\((.*)\)$', tok)
    if m: tok = m.group(2)
    tok = tok.strip('|')
    m = REG_RE.match(tok)
    if m: return {(m.group(1), int(m.group(2)))}
    m = RNG_RE.match(tok)
    if m: return {(m.group(1), i) for i in range(int(m.group(2)), int(m.group(3)) + 1)}
    if tok == 'vcc': return {('s', 106), ('s', 107)}
    if tok == 'vcc_lo': return {('s', 106)}
    if tok == 'vcc_hi': return {('s', 107)}
    if tok == 'exec': return {('s', 126), ('s', 127)}
    if tok == 'm0': return {('s', 124)}
    return set()

TRANS = ('v_exp_f32', 'v_log_f32', 'v_rcp_f32', 'v_rsq_f32', 'v_sqrt_f32', 'v_sin_f32', 'v_cos_f32', 'v_rcp_iflag_f32')

class Ins:
    __slots__ = ('text', 'op', 'ops', 'mods', 'defs', 'uses', 'cls', 'tag', 'passes', 'srcc', 'srcab', 'wide_store', 'is_dpp', 'comment')
    def __init__(self, text, tag=None):
        self.text = text.strip(); self.tag = tag
        t = self.text.split(';')[0].strip()
        parts = t.split(None, 1)
        self.op = parts[0] if parts else ''
        rest = parts[1] if len(parts) > 1 else ''
        toks = []; depth = 0; cur = ''
        for ch in rest:
            if ch == '[': depth += 1
            if ch == ']': depth -= 1
            if ch == ',' and depth == 0: toks.append(cur.strip()); cur = ''
            else: cur += ch
        if cur.strip(): toks.append(cur.strip())
        mods = ''
        if toks:
            last = toks[-1].split(None, 1)
            toks[-1] = last[0]
            if len(last) > 1: mods = last[1]
        self.ops = toks; self.mods = mods
        self.passes = 0; self.srcc = set(); self.srcab = set(); self.wide_store = False; self.is_dpp = False
        self.classify()
    def classify(self):
        op = self.op; o = self.ops; R = regs_of
        d = set(); u = set(); cls = 'other'
        base = re.sub(r'_(e32|e64|dpp|sdwa)$', '', op)
        if op.endswith(':') or op == '' or op.startswith('.'):
            cls = 'label'
        elif op.startswith('v_mfma'):
            cls = 'mfma'; d = R(o[0]); self.srcab = R(o[1]) | R(o[2]); self.srcc = R(o[3]); u = self.srcab | self.srcc
            self.passes = 8 if '32x32x16' in op else 4 if '16x16x32' in op else None
            assert self.passes, op
        elif op.startswith('v_'):
            cls = 'trans' if base in TRANS else 'valu'
            if 'row_' in self.mods or 'quad_perm' in self.mods or 'wave_' in self.mods or op.endswith('_dpp'):
                self.is_dpp = True
            if base.startswith('v_permlane') and 'swap' in base:
                d = R(o[0]) | R(o[1]); u = set(d); cls = 'permlane'
            elif base in ('v_add_co_u32', 'v_sub_co_u32', 'v_subrev_co_u32', 'v_addc_co_u32', 'v_subb_co_u32', 'v_mad_u64_u32', 'v_div_scale_f32'):
                d = R(o[0]) | R(o[1])
                for x in o[2:]: u |= R(x)
            elif base == 'v_nop':
                pass
            else:
                d = R(o[0])
                for x in o[1:]: u |= R(x)
                if base.startswith('v_fmac') or base.startswith('v_pk_fmac') or base.startswith('v_dot2c') or self.is_dpp or base.startswith('v_writelane') or op.endswith('_sdwa'):
                    u |= d
                if base in ('v_readfirstlane_b32', 'v_readlane_b32'): cls = 'readlane'
                if base.startswith('v_cmpx'): d |= R('exec')
            u |= R('exec')
        elif op.startswith('ds_'):
            cls = 'ds'
            if op.startswith('ds_read') or op.startswith('ds_bpermute') or op.startswith('ds_permute') or op.startswith('ds_swizzle') or '_rtn' in op:
                d = R(o[0])
                for x in o[1:]: u |= R(x)
            else:
                for x in o: u |= R(x)
        elif op.startswith('buffer_') or op.startswith('global_'):
            cls = 'vm'
            mods = self.mods.split()
            if op in ('buffer_wbl2', 'buffer_inv'):
                pass
            elif op.startswith('buffer_load'):
                if 'lds' in mods:
                    for x in o: u |= R(x)
                    u |= R('m0'); cls = 'vmlds'
                else:
                    d = R(o[0])
                    for x in o[1:]: u |= R(x)
            elif op.startswith('global_load_lds'):
                for x in o: u |= R(x)
                u |= R('m0'); cls = 'vmlds'
            elif op.startswith('global_load'):
                d = R(o[0])
                for x in o[1:]: u |= R(x)
            elif 'atomic' in op:
                rtn = 'sc0' in mods
                if op.startswith('buffer_'):
                    for x in o: u |= R(x)
                    if rtn: d = R(o[0])
                else:
                    if rtn:
                        d = R(o[0])
                        for x in o[1:]: u |= R(x)
                    else:
                        for x in o: u |= R(x)
            else:
                for x in o: u |= R(x)
                if op.endswith('x4') or op.endswith('x3'):
                    self.wide_store = True
                    self.srcab = R(o[0]) if op.startswith('buffer_') else R(o[1])
        elif op.startswith('s_load') or op.startswith('s_buffer_load') or op in ('s_memtime', 's_memrealtime'):
            cls = 'smem'; d = R(o[0])
            for x in o[1:]: u |= R(x)
        elif op.startswith('s_'):
            cls = 'salu'
            if op in ('s_waitcnt', 's_barrier', 's_nop', 's_endpgm', 's_setprio', 's_sleep', 's_branch') or op.startswith('s_cbranch'):
                cls = 'ctl'
                if op in ('s_cbranch_vccz', 's_cbranch_vccnz'): u |= R('vcc')
                if op in ('s_cbranch_execz', 's_cbranch_execnz'): u |= R('exec')
            elif op == 's_getpc_b64':
                d = R(o[0])
            elif op.startswith('s_cmp') or op.startswith('s_bitcmp'):
                for x in o: u |= R(x)
            else:
                d = R(o[0])
                for x in o[1:]: u |= R(x)
                if 'saveexec' in op: d |= R('exec'); u |= R('exec')
                if op in ('s_addk_i32', 's_mulk_i32', 's_cmov_b32', 's_cmov_b64'): u |= d
        else:
            raise ValueError('unknown instruction ' + self.text)
        self.defs = d; self.uses = u; self.cls = cls

class Kernel:
    def __init__(self, name, vgprs=256, sgprs=102, accum=None):
        self.name = name; self.items = []; self.vgprs = vgprs; self.sgprs = sgprs; self.accum = accum
        self.uniq = 0
    def __call__(self, text, tag=None):
        for line in text.strip().split('\n'):
            line = line.strip()
            if not line or line.startswith(';'): continue
            if Kernel.SC1 and line.startswith(Kernel.SC1) and ' sc1' not in line: line += ' sc1'
            self.items.append(Ins(line, tag))
        return self
    def label(self, name):
        self.items.append(('label', name))
    def wait_vm(self, tag):
        self.items.append(('wait_vm', tag))
    def wait_lgkm(self, tag):
        self.items.append(('wait_lgkm', tag))
    def drain(self, vm=True, lgkm=True):
        self.items.append(('drain', vm, lgkm))
    STAMPS = False
    SC1 = ()
    def stamp(self, first=False):
        if not Kernel.STAMPS: return
        if first:
            self.ns = 0
            self('s_memrealtime s[94:95]')
            self('v_lshrrev_b32 v255, 6, v0\nv_readfirstlane_b32 s99, v255')
        self(f's_memtime s[{40 + 2 * self.ns}:{41 + 2 * self.ns}]'); self.ns += 1
    def end(self, area=None, ns=None):
        if Kernel.STAMPS and area is not None:
            if ns is not None: self.ns = ns
            self.drain(); self.stamp(); self('s_memrealtime s[96:97]'); self.drain()
            self(f's_lshl_b32 s98, s2, 3\ns_add_u32 s98, s98, s99\ns_lshl_b32 s98, s98, 7\ns_add_u32 s98, s98, {area}')
            self('v_mov_b32 v2, 0')
            for i in range(self.ns):
                self(f'v_mov_b32 v3, s{40 + 2 * i}\nbuffer_store_dword v3, v2, s[4:7], s98 offen offset:{4 * i}')
            self(f'v_mov_b32 v3, {self.ns}\nbuffer_store_dword v3, v2, s[4:7], s98 offen offset:116')
            self('v_mov_b32 v3, s94\nbuffer_store_dword v3, v2, s[4:7], s98 offen offset:120')
            self('v_mov_b32 v3, s96\nbuffer_store_dword v3, v2, s[4:7], s98 offen offset:124')
        self('s_endpgm')
    def comment(self, s):
        self.items.append(('comment', s))
    def finalize(self):
        out = []
        vm = []
        lg = []
        pos = 0
        lastw = {}
        mfma_c_read = {}
        store_data = {}
        stats = dict(nops=0, waits=0, n=0)
        def emit(text):
            out.append('    ' + text)
        def do_wait(nvm, nlg):
            nonlocal pos, vm, lg
            parts = []
            if nvm is not None:
                nvm = min(nvm, 63)
                if nvm < len(vm):
                    parts.append(f'vmcnt({nvm})'); vm = vm[len(vm) - nvm:] if nvm else []
            if nlg is not None:
                nlg = min(nlg, 15)
                if nlg < len(lg):
                    parts.append(f'lgkmcnt({nlg})'); lg = lg[len(lg) - nlg:] if nlg else []
            if parts:
                emit('s_waitcnt ' + ' '.join(parts)); pos += 1; stats['waits'] += 1
        for it in self.items:
            if isinstance(it, tuple):
                if it[0] == 'label':
                    out.append(it[1] + ':')
                    vm = []; lg = []
                elif it[0] == 'rawlabel':
                    out.append(it[1] + ':')
                elif it[0] == 'comment':
                    out.append('    ; ' + it[1])
                elif it[0] == 'wait_vm':
                    idx = [i for i, e in enumerate(vm) if e['tag'] == it[1]]
                    if idx: do_wait(len(vm) - 1 - idx[-1], None)
                elif it[0] == 'wait_lgkm':
                    idx = [i for i, e in enumerate(lg) if e['tag'] == it[1]]
                    if idx:
                        n = len(lg) - 1 - idx[-1]
                        if any(e['smem'] for e in lg): n = 0
                        do_wait(None, n)
                elif it[0] == 'drain':
                    do_wait(0 if it[1] else None, 0 if it[2] else None)
                continue
            ins = it
            if ins.op == 's_waitcnt':
                m = re.search(r'vmcnt\((\d+)\)', ins.text); m2 = re.search(r'lgkmcnt\((\d+)\)', ins.text)
                if m:
                    n = int(m.group(1)); vm = vm[len(vm) - n:] if 0 < n < len(vm) else ([] if n == 0 else vm)
                if m2:
                    n = int(m2.group(1)); lg = lg[len(lg) - n:] if 0 < n < len(lg) else ([] if n == 0 else lg)
                emit(ins.text); pos += 1; continue
            touched = ins.uses | ins.defs
            nvm = None; nlg = None
            for i, e in enumerate(vm):
                hit = e['defs'] & ins.uses or (e['defs'] & ins.defs and ins.cls != 'vm')
                if hit: nvm = len(vm) - 1 - i
            for i, e in enumerate(lg):
                hit = e['defs'] & ins.uses or (e['defs'] & ins.defs and not (ins.cls == 'ds' and not e['smem']))
                if hit: nlg = len(lg) - 1 - i
            if nlg is not None and any(e['smem'] for e in lg): nlg = 0
            do_wait(nvm, nlg)
            need = 0
            def req(p, n):
                nonlocal need
                need = max(need, p + n + 1 - pos)
            isvalu = ins.cls in ('valu', 'trans', 'permlane', 'readlane')
            for r in ins.uses:
                w = lastw.get(r)
                if not w: continue
                p, c, ps, wi = w
                if c == 'mfma':
                    if ins.cls == 'mfma':
                        if r in ins.srcab: req(p, 12 if ps == 8 else 8)
                        elif r in ins.srcc:
                            if not (wi.defs == ins.srcc and ps == ins.passes): req(p, 10 if ps == 8 else 6)
                    else: req(p, 12 if ps == 8 else 8)
                elif c in ('valu', 'trans', 'permlane', 'readlane'):
                    if r[0] in 'va':
                        if ins.cls == 'mfma': req(p, 2)
                        if ins.cls == 'permlane' or ins.is_dpp: req(p, 2)
                        if ins.cls == 'readlane': req(p, 1)
                        if c == 'trans' and isvalu: req(p, 1)
                        if c == 'trans' and ins.cls in ('ds', 'vm', 'vmlds'): req(p, 1)
                    else:
                        if r in (('s', 126), ('s', 127)):
                            if ins.cls == 'mfma': req(p, 4)
                            if ins.is_dpp: req(p, 5)
                            if ins.cls in ('readlane', 'permlane'): req(p, 4)
                        elif isvalu: req(p, 4 if ins.cls == 'readlane' else 2)
                        elif ins.cls in ('vm', 'vmlds'): req(p, 5)
                        elif ins.cls in ('salu', 'ctl', 'smem'): req(p, 1)
                elif c == 'salu':
                    if r == ('s', 124) and ins.cls == 'vmlds': req(p, 1)
            for r in ins.defs:
                w = lastw.get(r)
                if w and w[1] == 'mfma':
                    p, c, ps, wi = w
                    if ins.cls == 'mfma':
                        if not (wi.defs == ins.defs and ps == ins.passes): req(p, 10 if ps == 8 else 6)
                    else: req(p, 12 if ps == 8 else 8)
                if r in mfma_c_read and ins.cls != 'mfma':
                    p, ps = mfma_c_read[r]; req(p, 7 if ps == 8 else 3)
                if r in store_data: req(store_data[r], 2)
            while need > 0:
                n = min(need, 16)
                emit(f's_nop {n - 1}'); pos += n; need -= n; stats['nops'] += n
            emit(ins.text)
            stats['n'] += 1
            for r in ins.defs:
                if ins.cls in ('vm', 'ds', 'smem'): lastw.pop(r, None)
                else: lastw[r] = (pos, ins.cls, ins.passes, ins)
            if ins.cls == 'mfma':
                for r in ins.srcc: mfma_c_read[r] = (pos, ins.passes)
            if ins.wide_store:
                for r in ins.srcab: store_data[r] = pos
            if ins.cls in ('vm', 'vmlds'): vm.append(dict(defs=set(ins.defs), tag=ins.tag))
            if ins.cls == 'ds': lg.append(dict(defs=set(ins.defs), tag=ins.tag, smem=False))
            if ins.cls == 'smem':
                lg.append(dict(defs=set(ins.defs), tag=ins.tag, smem=True)); lg.append(dict(defs=set(), tag=None, smem=True))
            if ins.op == 's_nop': pos += int(ins.ops[0], 0) + 1
            else: pos += 1
        self.stats = stats
        return out
    def maxreg(self, kind):
        m = -1
        for it in self.items:
            if isinstance(it, Ins):
                for k, i in it.defs | it.uses:
                    if k == kind and not (k == 's' and i >= 102): m = max(m, i)
        return m
    def text(self):
        body = self.finalize()
        head = [f'.globl {self.name}', '.p2align 8', f'.type {self.name},@function', f'{self.name}:']
        return '\n'.join(head + body)
    def descriptor(self):
        nv = self.maxreg('v') + 1; na = self.maxreg('a') + 1; ns = self.maxreg('s') + 1
        acc = max(4, (nv + 3) // 4 * 4)
        nfv = acc + na if na else nv
        assert acc <= 256 and nfv <= 512
        return f""".p2align 6
.amdhsa_kernel {self.name}
  .amdhsa_next_free_vgpr {nfv}
  .amdhsa_next_free_sgpr {max(ns, 16)}
  .amdhsa_accum_offset {acc}
  .amdhsa_group_segment_fixed_size 0
  .amdhsa_kernarg_size 120
  .amdhsa_user_sgpr_count 2
  .amdhsa_user_sgpr_kernarg_segment_ptr 1
  .amdhsa_system_sgpr_workgroup_id_x 1
.end_amdhsa_kernel"""

def vr(a, n=1):
    return f'v{a}' if n == 1 else f'v[{a}:{a + n - 1}]'
def sr(a, n=1):
    return f's{a}' if n == 1 else f's[{a}:{a + n - 1}]'

def interleave(main, fillers):
    slots = [[] for _ in main]
    for start, end, ins in fillers:
        n = len(ins); span = end - start
        for j, x in enumerate(ins):
            slots[start + (j * span) // n].append(x)
    out = []
    for m, s in zip(main, slots):
        out.append(m); out.extend(s)
    return out
```

```python
from asmlib import *
from layout import *

NT = ' nt'

def load_srd(k, s, arg):
    k(f's_load_dwordx2 s[{s}:{s+1}], s[0:1], {arg}')
    k(f's_mov_b32 s{s+2}, {SZ[arg]}')
    k(f's_mov_b32 s{s+3}, 0x20000')

def allreduce64(k, v, t, op='v_add_f32'):
    for r in (8, 4, 2, 1):
        k(f'{op}_dpp v{v}, v{v}, v{v} row_ror:{r} row_mask:0xf bank_mask:0xf')
    k(f'v_mov_b32 v{t}, v{v}\nv_permlane16_swap_b32 v{v}, v{t}\n{op} v{v}, v{v}, v{t}')
    k(f'v_mov_b32 v{t}, v{v}\nv_permlane32_swap_b32 v{v}, v{t}\n{op} v{v}, v{v}, v{t}')

def ln_row(k):
    k('s_mov_b32 s27, 0xffff0000')
    k('s_waitcnt vmcnt(8)')
    for i in range(8):
        if i & 1: k(f'v_and_b32 v{84 + i}, s27, v{80 + (i >> 1)}')
        else: k(f'v_lshlrev_b32 v{84 + i}, 16, v{80 + (i >> 1)}')
    k('v_add_f32 v92, v84, v85\nv_add_f32 v93, v86, v87\nv_add_f32 v94, v88, v89\nv_add_f32 v95, v90, v91')
    k('v_add_f32 v92, v92, v93\nv_add_f32 v94, v94, v95\nv_add_f32 v92, v92, v94')
    allreduce64(k, 92, 93)
    k('v_mul_f32 v92, 0x3b000000, v92')
    for i in range(8): k(f'v_sub_f32 v{84 + i}, v{84 + i}, v92')
    k('v_mul_f32 v92, v84, v84\nv_mul_f32 v93, v85, v85')
    for i in range(2, 8): k(f'v_fmac_f32 v{92 + (i & 1)}, v{84 + i}, v{84 + i}')
    k('v_add_f32 v92, v92, v93')
    allreduce64(k, 92, 93)
    k('v_mov_b32 v93, 0x3727c5ac')
    k('v_fmac_f32 v93, 0x3b000000, v92')
    k('v_rsq_f32 v93, v93')
    for i in range(8): k(f'v_mul_f32 v{84 + i}, v{84 + i}, v93')
    for i in range(4): k(f'v_cvt_pk_bf16_f32 v{80 + i}, v{84 + 2 * i}, v{85 + 2 * i}')
    k(f's_add_u32 s27, s17, {XN}')
    k('buffer_store_dwordx4 v[80:83], v3, s[4:7], s27 offen')

def gen_k0():
    k = Kernel('prep_kernel')
    k('s_cmp_ge_u32 s2, 256\ns_cbranch_scc1 L_k0_end')
    k.stamp(True)
    load_srd(k, 4, A_WS)
    load_srd(k, 12, A_X)
    k('v_and_b32 v1, 63, v0')
    k('v_lshrrev_b32 v2, 6, v0')
    k('v_readfirstlane_b32 s16, v2')
    k('s_lshl_b32 s17, s2, 13')
    k('v_lshlrev_b32 v3, 4, v0')
    k('buffer_load_dwordx4 v[80:83], v3, s[12:15], s17 offen' + NT)
    k(f's_lshl_b32 s18, s2, 9\ns_add_u32 s18, s18, {STATS}\nv_mov_b32 v4, -1\nv_lshlrev_b32 v5, 2, v0')
    k('s_cmp_gt_u32 s16, 1\ns_cbranch_scc1 L_k0_nofill')
    k('buffer_store_dword v4, v5, s[4:7], s18 offen')
    k.items.append(('rawlabel', 'L_k0_nofill'))
    for lim, name in ((64, 'wq'), (128, 'wo'), (142, 'wout'), (170, 'win'), (186, 'v'), (202, 'k'), (250, 'mod')):
        k(f's_cmp_lt_u32 s2, {lim}\ns_cbranch_scc1 L_k0_{name}')
    k('s_waitcnt vmcnt(0)')
    ln_row(k)
    k('s_endpgm')

    def trans_job(name, first, arg, RS, RB, setup, m16=None):
        k.label(f'L_k0_{name}')
        load_srd(k, 8, arg)
        k(f's_sub_u32 s18, s2, {first}')
        setup()
        rows_per = 1024 // RB
        lanes_per_row = RB // 16
        k(f'v_lshrrev_b32 v4, {lanes_per_row.bit_length() - 1}, v1')
        k(f'v_lshl_add_u32 v4, v2, {(8 * rows_per).bit_length() - 1}, v4')
        k(f's_mov_b32 s21, {RS}')
        k('v_mul_lo_u32 v4, v4, s21')
        k(f'v_and_b32 v5, {lanes_per_row - 1}, v1')
        k('v_lshl_add_u32 v4, v5, 4, v4')
        k('s_lshl_b32 s22, s16, 13')
        for i in range(8):
            k(f's_add_u32 m0, s22, {1024 * i}')
            k(f's_add_u32 s23, s19, {i * rows_per * RS}')
            k('buffer_load_dwordx4 v4, s[8:11], s23 offen' + NT + ' lds', tag='dma')
        if m16:
            k('v_lshrrev_b32 v6, 4, v1\nv_bfe_u32 v7, v1, 2, 2\nv_lshl_add_u32 v6, v6, 3, v7')
            k(f'v_lshlrev_b32 v6, {RB.bit_length() - 1}, v6\nv_and_b32 v7, 3, v1\nv_lshl_add_u32 v6, v7, 3, v6')
        else:
            k('v_lshrrev_b32 v6, 5, v1')
            k('v_bfe_u32 v7, v1, 2, 2')
            k('v_lshl_add_u32 v6, v6, 3, v7')
            k(f'v_lshlrev_b32 v6, {RB.bit_length() - 1}, v6')
            k('v_bfe_u32 v7, v1, 4, 1')
            k('v_lshl_add_u32 v6, v7, 5, v6')
            k('v_and_b32 v7, 1, v1')
            k('v_lshl_add_u32 v6, v7, 4, v6')
            k('v_bfe_u32 v7, v1, 1, 1')
            k('v_lshl_add_u32 v6, v7, 3, v6')
        wavepart = {1024: 128, 512: 64, 256: 8192}[RB]
        k(f'v_lshl_add_u32 v6, v2, {wavepart.bit_length() - 1}, v6')
        k('v_lshlrev_b32 v8, 4, v1')
        k.ns = 1
        ln_row(k)
        k.stamp()
        k.wait_vm('dma')
        k.stamp()
        k('s_barrier')
        for f in range(8):
            if m16:
                per = 8 // m16[0]
                sl, tl = f % per, f // per
                base = 32 * sl * RB + 32 * tl
            else:
                if RB == 1024: sl, tl = f >> 1, f & 1
                elif RB == 512: sl, tl = f, 0
                else: sl, tl = f >> 2, f & 3
                base = 16 * sl * RB + 64 * tl
            for m in range(2):
                k(f'ds_read_b64_tr_b16 v[{16 + 4 * f + 2 * m}:{17 + 4 * f + 2 * m}], v6 offset:{base + 4 * m * RB}')
        run, stride = (8 // m16[0], m16[1]) if m16 else (4, 4096)
        for f in range(8):
            if f and f % run == 0: k(f's_add_u32 s20, s20, {stride}')
            k(f'buffer_store_dwordx4 v[{16 + 4 * f}:{19 + 4 * f}], v8, s[4:7], s20 offen offset:{1024 * (f % run)}')
        k.end(STAMPS)

    def s_wq():
        k('s_lshr_b32 s24, s18, 3\ns_and_b32 s25, s18, 7')
        k('s_lshl_b32 s19, s24, 19\ns_lshl_b32 s26, s25, 10\ns_add_u32 s19, s19, s26')
        k('s_lshl_b32 s20, s25, 3\ns_add_u32 s20, s20, s16\ns_lshl_b32 s20, s20, 16')
        k(f's_lshl_b32 s26, s24, 13\ns_add_u32 s20, s20, s26\ns_add_u32 s20, s20, {WQF}')
    trans_job('wq', 0, A_WQ, 8192, 1024, s_wq)
    def s_wo():
        k('s_lshl_b32 s19, s18, 16')
        k('s_and_b32 s24, s18, 0x38\ns_add_u32 s20, s24, s16\ns_lshl_b32 s20, s20, 16')
        k(f's_and_b32 s24, s18, 7\ns_lshl_b32 s24, s24, 13\ns_add_u32 s20, s20, s24\ns_add_u32 s20, s20, {WOF}')
    trans_job('wo', 64, A_WO, 1024, 1024, s_wo)
    def s_wout():
        k('s_lshl_b32 s19, s18, 16')
        k(f's_mul_i32 s20, s16, {4 * 28672}\ns_lshl_b32 s24, s18, 11\ns_add_u32 s20, s20, s24\ns_add_u32 s20, s20, {WOUTF}')
    trans_job('wout', 128, A_WOUT, 1024, 1024, s_wout, m16=(4, 28672))
    def s_win():
        k('s_mul_i32 s24, s18, 37\ns_lshr_b32 s24, s24, 8')
        k('s_mul_i32 s25, s24, 7\ns_sub_u32 s25, s18, s25')
        k(f's_mul_i32 s19, s24, {128 * 3584}\ns_lshl_b32 s26, s25, 9\ns_add_u32 s19, s19, s26')
        k('s_lshl_b32 s20, s25, 3\ns_add_u32 s20, s20, s16\ns_lshl_b32 s20, s20, 15')
        k(f's_lshl_b32 s26, s24, 12\ns_add_u32 s20, s20, s26\ns_add_u32 s20, s20, {WINF}')
    assert all((j * 37) >> 8 == j // 7 for j in range(28))
    trans_job('win', 142, A_WIN, 3584, 512, s_win, m16=(2, 16384))
    def s_v():
        k('s_lshr_b32 s24, s18, 1\ns_and_b32 s25, s18, 1')
        k(f's_lshl_b32 s19, s24, 19\ns_lshl_b32 s26, s25, 16\ns_add_u32 s19, s19, s26\ns_add_u32 s19, s19, {1536 * 256}')
        k(f's_lshl_b32 s20, s18, 16\ns_lshl_b32 s26, s16, 13\ns_add_u32 s20, s20, s26\ns_add_u32 s20, s20, {VF}')
    trans_job('v', 170, A_V, 256, 256, s_v)

    k.label('L_k0_k')
    load_srd(k, 8, A_K)
    k('s_sub_u32 s18, s2, 186')
    k('s_lshr_b32 s24, s18, 1\ns_and_b32 s25, s18, 1')
    k(f's_lshl_b32 s19, s24, 19\ns_lshl_b32 s26, s25, 16\ns_add_u32 s19, s19, s26\ns_add_u32 s19, s19, {1536 * 256}')
    k('s_lshl_b32 s26, s16, 13\ns_add_u32 s19, s19, s26')
    k(f's_lshl_b32 s20, s18, 16\ns_add_u32 s20, s20, s26\ns_add_u32 s20, s20, {KF}')
    k('v_and_b32 v4, 0x13, v1')
    k('v_and_b32 v5, 4, v1\nv_lshl_or_b32 v4, v5, 1, v4')
    k('v_and_b32 v5, 8, v1\nv_lshrrev_b32 v5, 1, v5\nv_or_b32 v4, v4, v5')
    k('v_lshlrev_b32 v4, 8, v4')
    k('v_lshrrev_b32 v5, 5, v1\nv_lshl_add_u32 v4, v5, 4, v4')
    k('v_lshlrev_b32 v8, 4, v1')
    for f in range(8):
        k(f'buffer_load_dwordx4 v[{16 + 4 * f}:{19 + 4 * f}], v4, s[8:11], s19 offen offset:{32 * f}')
    ln_row(k)
    k('s_add_u32 s21, s20, 4096')
    for f in range(8):
        k(f'buffer_store_dwordx4 v[{16 + 4 * f}:{19 + 4 * f}], v8, s[4:7], s{20 + (f >> 2)} offen offset:{1024 * (f & 3)}')
    k.end(STAMPS, 1)

    k.label('L_k0_mod')
    load_srd(k, 8, A_WMOD)
    load_srd(k, 12, A_C)
    k('s_sub_u32 s18, s2, 202')
    k('s_lshl_b32 s19, s18, 7')
    k('v_lshrrev_b32 v4, 3, v0')
    k('v_and_b32 v5, 7, v0')
    k('v_lshlrev_b32 v6, 4, v4')
    k('buffer_load_dwordx4 v[8:11], v6, s[12:15], 0 offen')
    k(f's_mov_b32 s21, {8 * 6144}')
    k('v_mul_lo_u32 v6, v4, s21')
    k('v_lshl_add_u32 v6, v5, 4, v6')
    for i in range(8):
        k(f's_add_u32 s23, s19, {i * 6144}')
        k(f'buffer_load_dwordx4 v[{16 + 4 * i}:{19 + 4 * i}], v6, s[8:11], s23 offen' + NT)
    ln_row(k)
    k('s_mov_b32 s24, 0xbfb8aa3b')
    k('s_mov_b32 s25, 0xffff0000')
    for i in range(8):
        src = 8 + (i >> 1)
        if i & 1: k(f'v_and_b32 v{48 + i}, s25, v{src}')
        else: k(f'v_lshlrev_b32 v{48 + i}, 16, v{src}')
    for i in range(8): k(f'v_mul_f32 v{56 + i}, s24, v{48 + i}')
    for i in range(8): k(f'v_exp_f32 v{56 + i}, v{56 + i}')
    for i in range(8): k(f'v_add_f32 v{56 + i}, 1.0, v{56 + i}')
    for i in range(8): k(f'v_rcp_f32 v{56 + i}, v{56 + i}')
    for i in range(8): k(f'v_mul_f32 v{48 + i}, v{48 + i}, v{56 + i}')
    for i in range(8): k(f'v_cvt_pk_bf16_f32 v{48 + i}, v{48 + i}, v{48 + i}')
    for i in range(8): k(f'v_and_b32 v{48 + i}, s25, v{48 + i}')
    for i in range(8):
        for j in range(8):
            src = 16 + 4 * i + (j >> 1)
            if j & 1: k(f'v_and_b32 v{72 + j}, s25, v{src}')
            else: k(f'v_lshlrev_b32 v{72 + j}, 16, v{src}')
        for j in range(8):
            if i == 0: k(f'v_mul_f32 v{64 + j}, v{48 + i}, v{72 + j}')
            else: k(f'v_fmac_f32 v{64 + j}, v{48 + i}, v{72 + j}')
    k('v_lshlrev_b32 v6, 5, v0')
    k('ds_write_b128 v6, v[64:67]\nds_write_b128 v6, v[68:71] offset:16')
    k('v_lshlrev_b32 v7, 11, v2\nv_lshl_add_u32 v7, v1, 2, v7')
    k.drain(vm=False)
    for i in range(8): k(f'ds_read_b32 v{16 + i}, v7 offset:{256 * i}')
    for i in range(1, 8): k(f'v_add_f32 v16, v16, v{16 + i}')
    k('v_lshlrev_b32 v7, 2, v0')
    k('ds_write_b32 v7, v16 offset:16384')
    k.drain(vm=False)
    k('s_barrier')
    k('s_cmp_lg_u32 s16, 0\ns_cbranch_scc1 L_k0_end')
    for i in range(8): k(f'ds_read_b32 v{16 + i}, v7 offset:{16384 + 256 * i}')
    for i in range(1, 8): k(f'v_add_f32 v16, v16, v{16 + i}')
    k('v_cvt_pk_bf16_f32 v16, v16, v16\nv_and_b32 v16, s25, v16')
    k('s_lshr_b32 s24, s18, 3')
    k('s_cmp_eq_u32 s24, 1\ns_cselect_b32 s26, 1.0, 0\ns_cmp_eq_u32 s24, 4\ns_cselect_b32 s26, 1.0, s26')
    k('v_add_f32 v16, s26, v16')
    k('v_cvt_pk_bf16_f32 v16, v16, v16\nv_and_b32 v16, s25, v16')
    k(f's_lshl_b32 s19, s18, 8\ns_add_u32 s19, s19, {MOD}')
    k('buffer_store_dword v16, v7, s[4:7], s19 offen')
    k.end(STAMPS, 1)
    k.label('L_k0_end')
    k('s_endpgm')
    return k, (256, 512, 65536)
```

```python
from asmlib import *
from layout import *
from k0 import load_srd
import struct, math

def f32(x): return '0x%08x' % struct.unpack('<I', struct.pack('<f', x))[0]

REF_B = 50.0
REF_T = 80.0
L_K = [0, 32768]; L_VA = 65536; L_X = 98304; L_VPRE = 131072; L_VEND = 139264; L_H = 32768
vA0, vKa, vKb, vV1, vV2 = 1, 2, 3, 4, 5
vL, vL2, vMT, vT0, vT1, vO = 6, 7, 8, 9, 10, 11
vH = [12, 13, 14, 15, 2, 3, 6, 7]
FB = 16
CI = 48
QR = 64
OA = 96
SB = 160
SP = 224

def gen_k2(D=6, prio=0, G=2, NPRE=4, NLN=8, R=4, rotate=0, nowo=0, nosm=0, nodma=0, QB=0, OB=0, LA=20, wsp=1, OR=8, winwarm=1, pasc=''):
    k = Kernel('attn_kernel')
    stamp = k.stamp
    k('s_cmp_ge_u32 s2, 256\ns_cbranch_scc1 L_k2_end')
    stamp(True)
    load_srd(k, 4, A_WS)
    load_srd(k, 8, A_X)
    load_srd(k, 36, A_WSP)
    k('v_and_b32 v1, 63, v0\nv_lshrrev_b32 v9, 6, v0')
    k('v_readfirstlane_b32 s12, v9')
    lg = G.bit_length() - 1
    k(f's_and_b32 s13, s2, {8 // G - 1}\ns_lshl_b32 s13, s13, {lg}\ns_bfe_u32 s15, s2, {3 | (lg << 16)}\ns_add_u32 s13, s13, s15')
    k(f's_bfe_u32 s14, s2, {(3 - lg) | (lg << 16)}\ns_lshl_b32 s14, s14, {5 - lg}\ns_lshr_b32 s33, s2, {3 + lg}\ns_add_u32 s14, s14, s33')
    if not rotate: k('s_mov_b32 s33, 0')
    elif lg < 2: k(f's_lshr_b32 s33, s33, {2 - lg}')
    elif lg > 2: k(f's_lshl_b32 s33, s33, {lg - 2}')
    k('v_lshlrev_b32 v10, 5, v1')
    k('v_lshlrev_b32 v1, 4, v1')
    k(f's_lshl_b32 s15, s14, 16\ns_lshl_b32 s16, s12, 13\ns_add_u32 s15, s15, s16\ns_add_u32 s15, s15, {XN}\ns_add_u32 s16, s15, 4096')
    for j in range(8):
        k(f'buffer_load_dwordx4 {vr(FB + 4 * j, 4)}, v1, s[4:7], s{15 + (j >> 2)} offen offset:{1024 * (j & 3)}')
    assert MOD == 0
    k('buffer_load_dwordx4 v[96:99], v10, s[4:7], 0 offen\nbuffer_load_dwordx4 v[100:103], v10, s[4:7], 0 offen offset:16')
    k('buffer_load_dwordx4 v[104:107], v10, s[4:7], 0 offen offset:2048\nbuffer_load_dwordx4 v[108:111], v10, s[4:7], 0 offen offset:2064')
    k('s_lshl_b32 s17, s13, 3\ns_add_u32 s17, s17, s12\ns_lshl_b32 s17, s17, 16')
    k(f's_add_u32 s18, s17, {WOF}\ns_add_u32 s17, s17, {WQF}')
    NR = 36
    def ring(f):
        i = f % NR
        return SB + 4 * i if i < 24 else CI + 4 * (i - 24)
    k('s_lshl_b32 s32, s33, 13')
    def wload(f, reg, sp):
        if f % 4 == 0:
            k(f's_add_u32 s34, s32, {1024 * f}\ns_and_b32 s34, s34, 0xffff\ns_add_u32 s34, s34, s{sp}')
        k(f'buffer_load_dwordx4 {vr(reg, 4)}, v1, s[4:7], s34 offen offset:{1024 * (f & 3)}')
    k(f's_lshl_b32 s21, s12, 12\ns_lshl_b32 s22, s12, 10\ns_lshl_b32 s19, s13, 17\ns_add_u32 s20, s19, {VF}\ns_add_u32 s19, s19, {KF}')
    def dma(lds, gbase_s, goff, per_wave_kb, tag):
        out = []
        wpart = {4: 's21', 1: 's22', 3: 's23'}[per_wave_kb]
        out.append(f's_add_u32 m0, {wpart}, {lds}')
        out.append(f's_add_u32 s24, s{gbase_s}, {wpart}')
        if goff: out.append(f's_add_u32 s24, s24, {goff}')
        for i in range(per_wave_kb):
            out.append((f'buffer_load_dwordx4 v1, s[4:7], s24 offen offset:{1024 * i} lds', tag))
        return out
    def put(lst):
        for x in lst:
            if isinstance(x, tuple): k(x[0], tag=x[1])
            elif callable(x): x()
            else: k(x)
    k('s_mul_i32 s23, s12, 3072')
    if prio == 1:
        k('s_cmp_lt_u32 s12, 4\ns_cbranch_scc1 L_k2_noprio\ns_setprio 1')
        k.items.append(('rawlabel', 'L_k2_noprio'))
    k('v_lshrrev_b32 v9, 4, v1')
    k('s_and_b32 s25, s12, 1')
    k('s_lshr_b32 s26, s12, 2\ns_lshl_b32 s26, s26, 15\ns_and_b32 s27, s12, 3\ns_lshl_b32 s27, s27, 7\ns_add_u32 s26, s26, s27')
    k(f's_add_u32 s26, s26, {L_H}')
    k('s_lshl_b32 s27, s33, 3\nv_subrev_u32 v10, s27, v9\nv_and_b32 v10, 63, v10')
    k('v_lshlrev_b32 v11, 9, v10')
    k('v_and_b32 v10, 7, v10\nv_lshl_add_u32 v11, v10, 4, v11\nv_add_u32 v11, s26, v11')
    k('v_lshrrev_b32 v10, 5, v9\nv_and_b32 v9, 31, v9\nv_xor_b32 v9, v9, v10\nv_lshlrev_b32 v9, 4, v9\nv_lshl_add_u32 v9, v10, 9, v9')
    k(f's_lshl_b32 s26, s25, 15\ns_add_u32 s27, s26, {L_H}\ns_sub_u32 s26, {L_H + 32768}, s26')
    for b in range(4):
        k(f'v_xor_b32 v10, {32 * b}, v9')
        k(f'v_add_u32 v{vH[b]}, s27, v10\nv_add_u32 v{vH[4 + b]}, s26, v10')
    k('s_mov_b32 s28, 0xffff0000')
    k('s_barrier')
    stamp()
    for f in range(NPRE): wload(f, ring(f), 17)
    stamp()
    nw = NPRE
    for j in range(8):
        t = 112 + 8 * (j & 1); p = 128 + 4 * (j & 1)
        for i in range(8):
            src = FB + 4 * j + (i >> 1)
            if i & 1: k(f'v_and_b32 v{t + i}, s28, v{src}')
            else: k(f'v_lshlrev_b32 v{t + i}, 16, v{src}')
        for i in range(8): k(f'v_fma_f32 v{t + i}, v{t + i}, v{104 + i}, v{96 + i}')
        if j == 0: stamp()
        for i in range(4): k(f'v_cvt_pk_bf16_f32 v{p + i}, v{t + 2 * i}, v{t + 2 * i + 1}')
        k(f'v_xor_b32 v10, {16 * j}, v11')
        k(f'ds_write_b128 v10, {vr(p, 4)}')
        while nw < NPRE + NLN * (j + 1) // 8: wload(nw, ring(nw), 17); nw += 1
    stamp()
    k.drain(vm=False)
    k('s_barrier')
    def qacc(e, lam): return OA + 16 * (2 * e + lam)
    def bbuf(s, lam): return FB + 4 * ((2 * s + lam) % 8)
    def bread_q(s):
        for lam in range(2): k(f'ds_read_b128 {vr(bbuf(s, lam), 4)}, v{vH[4 * lam + (s & 3)]} offset:{1024 * s}')
    def chunks(lst):
        out = []; cur = []
        for x in lst:
            cur.append(x)
            if isinstance(x, tuple): out.append(cur); cur = []
        return out
    qflat = chunks(dma(L_K[0], 19, 0, 4, 'K0') + dma(L_VPRE, 20, 0, 1, 'K0'))
    for s in range(3): bread_q(s)
    for s in range(32):
        for e in range(2):
            for lam in range(2):
                c = vr(qacc(e, lam), 16) if s else '0'
                k(f'v_mfma_f32_32x32x16_bf16 {vr(qacc(e, lam), 16)}, {vr(ring(2 * s + e), 4)}, {vr(bbuf(s, lam), 4)}, {c}')
            for _ in range((R + 1 - e) // 2):
                if nw < 64 and nw <= 2 * s + e + LA: wload(nw, ring(nw), 17); nw += 1
            if e == 0 and s + 3 < 32: bread_q(s + 3)
            if e == 1 and s % 4 == 3 and s < 31: stamp()
            if e == 1 and s >= 16 and qflat: put(qflat.pop(0))
            if e == 1 and QB and (s + 1) % QB == 0 and s < 31: k('s_barrier')
    stamp()
    assert nw == 64
    k('s_lshl_b32 s26, s25, 12\ns_sub_u32 s27, 4096, s26')
    k(f'v_add_u32 v{vKa}, s26, v1\nv_add_u32 v{vKb}, s27, v1\nv_add_u32 v{vV1}, 0x10000, v1\nv_add_u32 v{vV2}, 0x20000, v1')
    k(f's_mov_b32 s29, {f32(math.log2(math.e) / math.sqrt(128))}')
    k(f'v_add_u32 v{vT0}, s21, v{vV1}')
    k(f's_xor_b32 s26, s21, 4096\nv_add_u32 v{vT1}, s26, v{vV1}')
    for lam in (1, 0):
        for e in range(2):
            a = qacc(e, lam)
            for r in range(16): k(f'v_mul_f32 v{a + r}, s29, v{a + r}')
            for hf in range(2):
                u = 2 * e + hf
                dst = (FB + 4 * u) if lam else (QR + 4 * u)
                for i in range(4): k(f'v_cvt_pk_bf16_f32 v{dst + i}, v{a + 8 * hf + 2 * i}, v{a + 8 * hf + 2 * i + 1}')
                if lam: k(f'ds_write_b128 v{vT0}, {vr(dst, 4)} offset:{L_X - 65536 + 1024 * u}')
    k.wait_vm('K0')
    stamp()
    k.drain(vm=False)
    k('s_barrier')
    for u in range(4): k(f'ds_read_b128 {vr(QR + 16 + 4 * u, 4)}, v{vT1} offset:{L_X - 65536 + 1024 * u}')
    def S(t): return SB + 16 * (t % 4)
    def kfrag(t, u):
        return f'v{vKa if u < 4 else vKb} offset:{L_K[(t >> 2) & 1] + (t & 3) * 8192 + (u & 3) * 1024}'
    def vfrag(t, e, dt):
        o = (e * 4 + dt) * 1024
        if t == 0: return f'v{vV2} offset:{L_VPRE - 131072 + o}'
        if t >= 13: return f'v{vV2} offset:{L_VEND - 131072 + (t - 13) * 8192 + o}'
        c = (t - 1) >> 2
        return f'v{vV1} offset:{(32768 if c == 1 else 0) + ((t - 1) & 3) * 8192 + o}'
    seq = []; group_start = {}
    def qk(t): return [('qk', t, u) for u in range(8)]
    def pv(t): return [('pv', t, i) for i in range(8)]
    seq += qk(0) + qk(1) + qk(2)
    for t in range(16):
        group_start[t] = len(seq)
        if t + 3 < 16:
            for a, b in zip(qk(t + 3), pv(t)): seq += [a, b]
        else: seq += pv(t)
    N = len(seq)
    bars = {group_start[1]: ('B2', 'S1'), group_start[5]: ('B3', 'S2'), group_start[9]: ('B4', 'S3')}
    after_bar = {
        'B1': dma(L_K[1], 19, 32768, 4, 'S1') + dma(L_VA, 20, 8192, 4, 'S1') + dma(L_VEND, 20, 13 * 8192, 3, 'S1'),
        'B2': dma(L_K[0], 19, 65536, 4, 'S2') + dma(L_X, 20, 8192 + 32768, 4, 'S2'),
        'B3': dma(L_K[1], 19, 98304, 4, 'S3') + dma(L_VA, 20, 8192 + 65536, 4, 'S3'),
        'B4': [],
    }
    def frag_addr(n):
        kind, t, i = seq[n]
        return kfrag(t, i) if kind == 'qk' else vfrag(t, i >> 2, i & 3)
    def fbuf(n): return FB + 4 * (n % 8)
    def mfma(n):
        kind, t, i = seq[n]
        if kind == 'qk':
            c = vr(S(t), 16) if i else ('0' if t < 2 else vr(CI, 16))
            return f'v_mfma_f32_32x32x16_bf16 {vr(S(t), 16)}, {vr(fbuf(n), 4)}, {vr(QR + 4 * i, 4)}, {c}'
        e, dt = i >> 2, i & 3
        c = vr(OA + 16 * dt, 16) if (t or e) else '0'
        return f'v_mfma_f32_32x32x16_bf16 {vr(OA + 16 * dt, 16)}, {vr(fbuf(n), 4)}, {vr(S(t) + 4 * e, 4)}, {c}'
    def tile_max(t, dst):
        s = S(t); o = [f'v_max3_f32 v{dst}, v{s}, v{s + 1}, v{s + 2}']
        for i in range(3, 15, 2): o.append(f'v_max3_f32 v{dst}, v{dst}, v{s + i}, v{s + i + 1}')
        o.append(f'v_max_f32 v{dst}, v{dst}, v{s + 15}')
        return o
    def sm(t):
        s = S(t); o = []
        for hf in range(2):
            for r in range(8 * hf, 8 * hf + 8): o.append(f'v_exp_f32 v{s + r}, v{s + r}')
            for r in range(8 * hf, 8 * hf + 8):
                acc = vL if r & 1 else vL2
                if t == 0 and r < 2: o.append(f'v_mov_b32 v{acc}, v{s + r}')
                else: o.append(f'v_add_f32 v{acc}, v{acc}, v{s + r}')
            for i in range(4): o.append(f'v_cvt_pk_bf16_f32 v{s + 4 * hf + i}, v{s + 8 * hf + 2 * i}, v{s + 8 * hf + 2 * i + 1}')
        a = o[0:8]; b = o[8:16]; c = o[16:20]; d = o[20:28]; e = o[28:36]; f = o[36:40]
        out = a[:]
        for x, y in zip(d, b): out += [x, y]
        out += c + e + f
        return out
    def check(t):
        return [f'v_cmp_lt_f32 vcc, s30, v{vMT}', f's_cbranch_vccnz L_fix{t}', ('LABEL', f'L_ret{t}')]
    k(f's_mov_b32 s30, {f32(REF_T)}\ns_mov_b32 s31, {f32(REF_B)}')
    fill = [[] for _ in range(N)]
    def spread(lo, hi, ins):
        n = len(ins)
        for j, x in enumerate(ins): fill[lo + (j * (hi - lo)) // n].append(x)
    start = tile_max(0, vMT) + [f'v_mov_b32 v{vT0}, v{vMT}', f'v_permlane32_swap_b32 v{vMT}, v{vT0}', f'v_max_f32 v{vMT}, v{vMT}, v{vT0}',
                                f'v_add_f32 v{vMT}, s31, v{vMT}', f'v_ceil_f32 v{vMT}, v{vMT}', f'v_sub_f32 v{CI}, 0, v{vMT}']
    start += [f'v_mov_b32 v{CI + i}, v{CI}' for i in range(1, 16)]
    spread(10, 16, start)
    spread(16, 24, [f'v_add_f32 v{S(0) + r}, v{S(0) + r}, v{CI}' for r in range(16)] + sm(0)
           + [f'v_add_f32 v{S(1) + r}, v{S(1) + r}, v{CI}' for r in range(16)] + tile_max(1, vMT) + check(1))
    for t in range(15):
        lo = group_start[t]; hi = group_start[t + 1]
        work = sm(t + 1)
        if t + 2 < 16: work = work + tile_max(t + 2, vMT) + check(t + 2)
        if not nosm: spread(lo, hi, work)
    wslots = [SP + 4 * i for i in range(8)] + [QR + 4 * i for i in range(8)] + [CI + 4 * i for i in range(4)] + \
             [S(12) + 4 * i for i in range(4)] + [S(13) + 4 * i for i in range(4)] + [S(14) + 4 * i for i in range(4)] + [S(15) + 4 * i for i in range(4)]
    NW = len(wslots)
    def wl(f): return lambda: wload(f, wslots[f % NW], 18)
    spread(group_start[9], group_start[13], [wl(f) for f in range(8)])
    spread(group_start[13], N, [wl(f) for f in range(8, 24)])
    def spread_dma(name, lo, hi):
        ch = chunks(after_bar[name])
        if nodma: return
        for j, c in enumerate(ch): fill[lo + (j * (hi - lo)) // len(ch)] += c
    spread_dma('B1', 0, 22)
    spread_dma('B2', group_start[1] - (D - 2), group_start[1] + 36)
    spread_dma('B3', group_start[5] - (D - 2), group_start[5] + 36)
    def warm(j):
        return [f's_lshl_b32 s35, s2, 15', f's_add_u32 s35, s35, {8192 * j}', f's_cmp_eq_u32 s12, {2 * j}', f's_cselect_b32 s35, s35, {SZ[A_WSP]}',
                f'v_lshlrev_b32 v{vO}, 3, v1', f'buffer_load_dword v0, v{vO}, s[36:39], s35 offen']
    if wsp:
        for j, t in enumerate((1, 5, 9)): fill[group_start[t] - (D - 2)] += warm(j)
    nread = 0
    def reads_upto(m, limit):
        nonlocal nread
        while nread <= m and nread < limit:
            k(f'ds_read_b128 {vr(fbuf(nread), 4)}, {frag_addr(nread)}'); nread += 1
    barlist = sorted(bars)
    def next_bar(n):
        for b in barlist:
            if b > n - 1 and b not in done: return b
        return N
    done = set()
    reads_upto(D - 1, N)
    for n in range(N):
        k(mfma(n))
        nb = next_bar(n)
        if nb < N and n == nb - (D - 2):
            name, tag = bars[nb]
            k.wait_vm(tag); stamp(); k.drain(vm=False); k('s_barrier'); done.add(nb)
            nb = next_bar(n)
        reads_upto(n + D, nb)
        for x in fill[n]:
            if isinstance(x, tuple) and x[0] == 'LABEL': k.items.append(('rawlabel', x[1]))
            else: put([x])
    stamp()
    k(f'v_add_f32 v{vL}, v{vL}, v{vL2}')
    k(f'v_mov_b32 v{vT0}, v{vL}\nv_permlane32_swap_b32 v{vL}, v{vT0}\nv_add_f32 v{vL}, v{vL}, v{vT0}\nv_rcp_f32 v{vL}, v{vL}')
    k(f's_and_b32 s26, s12, 6\ns_sub_u32 s26, s26, s33\ns_add_u32 s27, s26, 1\ns_and_b32 s26, s26, 7\ns_and_b32 s27, s27, 7\ns_mul_i32 s24, s25, {L_X}')
    k(f's_lshl_b32 s26, s26, 12\ns_lshl_b32 s27, s27, 12\ns_add_u32 s26, s26, s24\ns_add_u32 s27, s27, s24\nv_add_u32 v{vO}, s26, v1\nv_add_u32 v{vT1}, s27, v1')
    nw = 24
    for dt in range(4):
        a = OA + 16 * dt
        for r in range(16): k(f'v_mul_f32 v{a + r}, v{a + r}, v{vL}')
        for hf in range(2):
            dst = FB + 4 * (2 * dt + hf)
            for i in range(4): k(f'v_cvt_pk_bf16_f32 v{dst + i}, v{a + 8 * hf + 2 * i}, v{a + 8 * hf + 2 * i + 1}')
            k(f'ds_write_b128 v{vO if dt < 2 else vT1}, {vr(dst, 4)} offset:{1024 * ((2 * dt + hf) & 3)}')
        for f in range(nw, nw + 3): wload(f, wslots[f], 18)
        nw += 3
    assert nw == NW
    stamp()
    k.drain(vm=False)
    k('s_barrier')
    def bread_o(s):
        k(f'ds_read_b128 {vr(bbuf(s, 0), 4)}, v1 offset:{1024 * s}')
        k(f'ds_read_b128 {vr(bbuf(s, 1), 4)}, v{vV1} offset:{L_X - 65536 + 1024 * s}')
    for s in range(3): bread_o(s)
    for s in range(32):
        for e in range(2):
            for tt in range(2):
                c = vr(qacc(e, tt), 16) if s else '0'
                k(f'v_mfma_f32_32x32x16_bf16 {vr(qacc(e, tt), 16)}, {vr(wslots[(2 * s + e) % NW], 4)}, {vr(bbuf(s, tt), 4)}, {c}')
            if nw < 64 and nw <= 2 * s + e + NW and nw - NW < ((2 * s + e + 1) * OR + 7) // 8 and not nowo: wload(nw, wslots[nw % NW], 18); nw += 1
            if e == 0 and s + 3 < 32: bread_o(s + 3)
            if e == 1 and OB and (s + 1) % OB == 0 and s < 31: k('s_barrier')
            if e == 1 and s == 18 and wsp: put(warm(3))
            if e == 1 and s == 22 and winwarm:
                k(f's_and_b32 s35, s2, 1\ns_lshr_b32 s24, s12, 2\ns_lshl_b32 s24, s24, 1\ns_add_u32 s35, s35, s24\ns_mul_i32 s35, s35, {28 * 16384}')
                k(f's_lshr_b32 s24, s2, 3\ns_lshl_b32 s24, s24, 2\ns_and_b32 s34, s12, 3\ns_add_u32 s24, s24, s34\ns_mul_i32 s24, s24, 3584\ns_add_u32 s35, s35, s24\ns_add_u32 s35, s35, {WINF}')
                k(f'v_lshlrev_b32 v{vT1}, 3, v1\nv_min_u32 v{vT1}, 3456, v{vT1}\nbuffer_load_dword v0, v{vT1}, s[4:7], s35 offen')
            if e == 1 and s == 20:
                k(f's_lshl_b32 s35, s2, 13\ns_lshl_b32 s24, s12, 10\ns_add_u32 s35, s35, s24')
                k(f'v_lshlrev_b32 v{vT1}, 3, v1\nv_and_b32 v{vT1}, 0x380, v{vT1}\nbuffer_load_dword v0, v{vT1}, s[8:11], s35 offen')
    stamp()
    k(f's_lshl_b32 s26, s13, 21\ns_lshl_b32 s27, s14, 16\ns_add_u32 s26, s26, s27\ns_add_u32 s26, s26, s21\ns_add_u32 s26, s26, {PA}\ns_add_u32 s27, s26, 32768')
    for e in range(2):
        for tt in range(2):
            a = qacc(e, tt)
            for hf in range(2):
                dst = FB + 4 * (4 * e + 2 * tt + hf)
                for i in range(4): k(f'v_cvt_pk_bf16_f32 v{dst + i}, v{a + 8 * hf + 2 * i}, v{a + 8 * hf + 2 * i + 1}')
                k(f'buffer_store_dwordx4 {vr(dst, 4)}, v1, s[4:7], s{26 + tt} offen offset:{2048 * e + 1024 * hf}' + (' sc1' if pasc else ''))
    k.end(STAMPS + 1 * 0x40000)
    k.label('L_k2_end')
    k('s_endpgm')
    for t in range(1, 16):
        k.label(f'L_fix{t}')
        k('s_nop 15')
        k(f'v_mov_b32 v{vT0}, v{vMT}\ns_nop 1\nv_permlane32_swap_b32 v{vMT}, v{vT0}\nv_max_f32 v{vMT}, v{vMT}, v{vT0}')
        k(f'v_add_f32 v{vMT}, s31, v{vMT}\nv_ceil_f32 v{vMT}, v{vMT}\nv_max_f32 v{vMT}, 0, v{vMT}')
        k(f'v_min_f32 v{vT0}, 0x43800000, v{vMT}\nv_cvt_i32_f32 v{vT0}, v{vT0}\nv_sub_u32 v{vT0}, 0, v{vT0}')
        if t >= 2:
            for r in range(64): k(f'v_ldexp_f32 v{OA + r}, v{OA + r}, v{vT0}')
        k(f'v_ldexp_f32 v{vL}, v{vL}, v{vT0}\nv_ldexp_f32 v{vL2}, v{vL2}, v{vT0}')
        p = S(t - 1)
        for i in range(8):
            k(f'v_lshlrev_b32 v{vT1}, 16, v{p + i}\nv_and_b32 v{p + i}, s28, v{p + i}')
            k(f'v_ldexp_f32 v{vT1}, v{vT1}, v{vT0}\nv_ldexp_f32 v{p + i}, v{p + i}, v{vT0}')
            k(f'v_cvt_pk_bf16_f32 v{p + i}, v{vT1}, v{p + i}')
        for tt in (t, t + 1):
            if tt < 16:
                for r in range(16): k(f'v_sub_f32 v{S(tt) + r}, v{S(tt) + r}, v{vMT}')
        if t + 2 < 16:
            for r in range(16): k(f'v_sub_f32 v{CI + r}, v{CI + r}, v{vMT}')
        k(f's_nop 1\ns_branch L_ret{t}')
    return k, (256, 512, 163840)
```

```python
from asmlib import *
from layout import *
from k0 import load_srd

def unpack8(k, dst, src, smask):
    for i in range(8):
        if i & 1: k(f'v_and_b32 v{dst + i}, s{smask}, v{src + (i >> 1)}')
        else: k(f'v_lshlrev_b32 v{dst + i}, 16, v{src + (i >> 1)}')

def red_8_16_32(k, v, t):
    k(f'v_add_f32_dpp v{v}, v{v}, v{v} row_ror:8 row_mask:0xf bank_mask:0xf')
    k(f'v_mov_b32 v{t}, v{v}\nv_permlane16_swap_b32 v{v}, v{t}\nv_add_f32 v{v}, v{v}, v{t}')
    k(f'v_mov_b32 v{t}, v{v}\nv_permlane32_swap_b32 v{v}, v{t}\nv_add_f32 v{v}, v{v}, v{t}')

def gen_k3(nt=1):
    k = Kernel('mid_kernel')
    k('s_cmp_ge_u32 s2, 256\ns_cbranch_scc1 L_k3_end')
    k.stamp(True)
    load_srd(k, 4, A_WS)
    load_srd(k, 8, A_X)
    k('v_and_b32 v1, 7, v0')
    k('v_lshrrev_b32 v2, 3, v0')
    k('v_and_b32 v6, 63, v0\nv_lshrrev_b32 v7, 6, v0')
    k('v_lshlrev_b32 v3, 9, v2\nv_lshl_add_u32 v3, v1, 4, v3')
    k('s_lshr_b32 s12, s2, 2\ns_lshl_b32 s12, s12, 15\ns_and_b32 s13, s2, 3\ns_lshl_b32 s13, s13, 7\ns_add_u32 s12, s12, s13')
    k('v_lshlrev_b32 v4, 10, v1\nv_lshl_add_u32 v4, v2, 4, v4\ns_lshl_b32 s14, s2, 13')
    k('v_lshlrev_b32 v5, 5, v2')
    for gi in range(8):
        k(f's_add_u32 s15, s12, {PA + gi * (2 << 20)}')
        k(f'buffer_load_dwordx4 {vr(16 + 4 * gi, 4)}, v3, s[4:7], s15 offen' + (' nt' if nt else ''))
    k('buffer_load_dwordx4 v[48:51], v4, s[8:11], s14 offen')
    for j, sec in enumerate((2, 3, 4)):
        k(f's_mov_b32 s15, {MOD + sec * 2048}')
        k(f'buffer_load_dwordx4 {vr(52 + 8 * j, 4)}, v5, s[4:7], s15 offen\nbuffer_load_dwordx4 {vr(56 + 8 * j, 4)}, v5, s[4:7], s15 offen offset:16')
    k('s_mov_b32 s16, 0xffff0000')
    unpack8(k, 80, 16, 16)
    for gi in range(1, 8):
        unpack8(k, 88, 16 + 4 * gi, 16)
        for i in range(8): k(f'v_add_f32 v{80 + i}, v{80 + i}, v{88 + i}')
    unpack8(k, 88, 48, 16)
    for i in range(8): k(f'v_fmac_f32 v{88 + i}, v{52 + i}, v{80 + i}')
    for i in range(4): k(f'v_cvt_pk_bf16_f32 v{48 + i}, v{88 + 2 * i}, v{89 + 2 * i}')
    k.stamp()
    k(f's_add_u32 s15, s14, {X1}')
    k('buffer_store_dwordx4 v[48:51], v4, s[4:7], s15 offen')
    unpack8(k, 80, 48, 16)
    k('v_add_f32 v8, v80, v81\nv_add_f32 v9, v82, v83\nv_add_f32 v10, v84, v85\nv_add_f32 v11, v86, v87\nv_add_f32 v8, v8, v9\nv_add_f32 v10, v10, v11\nv_add_f32 v8, v8, v10')
    red_8_16_32(k, 8, 9)
    k('v_lshlrev_b32 v12, 5, v1\nv_lshl_add_u32 v13, v7, 2, v12')
    k('ds_write_b32 v13, v8')
    k.drain(vm=False); k('s_barrier')
    k('ds_read_b128 v[16:19], v12\nds_read_b128 v[20:23], v12 offset:16')
    k('v_add_f32 v16, v16, v17\nv_add_f32 v18, v18, v19\nv_add_f32 v20, v20, v21\nv_add_f32 v22, v22, v23\nv_add_f32 v16, v16, v18\nv_add_f32 v20, v20, v22\nv_add_f32 v8, v16, v20')
    k('v_mul_f32 v8, 0x3b000000, v8')
    for i in range(8): k(f'v_sub_f32 v{80 + i}, v{80 + i}, v8')
    k('v_mul_f32 v8, v80, v80\nv_mul_f32 v9, v81, v81')
    for i in range(2, 8): k(f'v_fmac_f32 v{8 + (i & 1)}, v{80 + i}, v{80 + i}')
    k('v_add_f32 v8, v8, v9')
    red_8_16_32(k, 8, 9)
    k('ds_write_b32 v13, v8 offset:256')
    k.drain(vm=False); k('s_barrier')
    k('ds_read_b128 v[16:19], v12 offset:256\nds_read_b128 v[20:23], v12 offset:272')
    k('v_add_f32 v16, v16, v17\nv_add_f32 v18, v18, v19\nv_add_f32 v20, v20, v21\nv_add_f32 v22, v22, v23\nv_add_f32 v16, v16, v18\nv_add_f32 v20, v20, v22\nv_add_f32 v8, v16, v20')
    k('v_mov_b32 v9, 0x3727c5ac\nv_fmac_f32 v9, 0x3b000000, v8\nv_rsq_f32 v9, v9')
    for i in range(8): k(f'v_mul_f32 v{80 + i}, v{80 + i}, v9')
    for i in range(8): k(f'v_fma_f32 v{80 + i}, v{80 + i}, v{68 + i}, v{60 + i}')
    for i in range(4): k(f'v_cvt_pk_bf16_f32 v{16 + i}, v{80 + 2 * i}, v{81 + 2 * i}')
    k(f's_lshr_b32 s15, s2, 1\ns_lshl_b32 s15, s15, 14\ns_and_b32 s13, s2, 1\ns_lshl_b32 s13, s13, 7\ns_add_u32 s15, s15, s13\ns_add_u32 s15, s15, {H2F}')
    k('v_lshlrev_b32 v3, 8, v2\nv_lshl_add_u32 v3, v1, 4, v3')
    k('buffer_store_dwordx4 v[16:19], v3, s[4:7], s15 offen')
    k.end(STAMPS + 2 * 0x40000)
    k.label('L_k3_end')
    k('s_endpgm')
    return k, (256, 512, 1024)
```

```python
from asmlib import *
from layout import *
from k0 import load_srd
from k2 import f32
import math

def gen_k4(LA=12, S0=98, S1=118, KA=8):
    k = Kernel('win_kernel')
    L_TR = 65536; TRW = 64 * 40
    L_ST = L_TR + 7 * TRW
    L_FIN = L_ST + 4096
    LDS = L_FIN + 512
    W = 192; NW = 16; A2 = 16; A1 = 32; T = 48; FB = 64
    k('s_cmp_ge_u32 s2, 256\ns_cbranch_scc1 L_k4_end')
    k.stamp(True)
    load_srd(k, 4, A_WS)
    k('v_and_b32 v2, 63, v0\nv_lshrrev_b32 v3, 6, v0')
    k('v_readfirstlane_b32 s12, v3')
    k('s_and_b32 s13, s2, 1\ns_lshl_b32 s13, s13, 2\ns_bfe_u32 s14, s2, 0x20003\ns_add_u32 s13, s13, s14')
    k('s_bfe_u32 s14, s2, 0x20001\ns_lshl_b32 s14, s14, 3\ns_lshr_b32 s15, s2, 5\ns_add_u32 s14, s14, s15')
    k('v_lshlrev_b32 v1, 4, v2')
    k(f's_lshl_b32 s15, s12, 13\ns_lshl_b32 s16, s14, 16\ns_add_u32 s16, s16, s15\ns_add_u32 s16, s16, {H2F}')
    for h in range(2):
        k(f's_add_u32 m0, s15, {4096 * h}\ns_add_u32 s17, s16, {4096 * h}')
        for i in range(4): k(f'buffer_load_dwordx4 v1, s[4:7], s17 offen offset:{1024 * i} lds', tag='h2')
    k('s_barrier')
    k('s_cmp_eq_u32 s12, 7\ns_cbranch_scc1 L_k4_helper')
    k(f's_mul_i32 s18, s13, 7\ns_add_u32 s18, s18, s12')
    k(f's_lshl_b32 s19, s18, 14\ns_add_u32 s19, s19, {WINF}\ns_add_u32 s17, s19, {56 * 16384}')
    worder = [(ph, ks) for ks in range(KA) for ph in range(2)] + [(0, ks) for ks in range(KA, 16)] + [(1, ks) for ks in range(KA, 16)]
    assert 4 * (16 - KA) <= 32
    def wload(f):
        ph, ks = worder[f]; sp = 19 if ph else 17
        if ks and ks % 4 == 0: k(f's_add_u32 s{sp}, s{sp}, 4096')
        k(f'buffer_load_dwordx4 {vr(W + 4 * (f % NW), 4)}, v1, s[4:7], s{sp} offen offset:{1024 * (ks & 3)}')
    for f in range(LA): wload(f)
    c0 = -2 * math.log2(math.e) * math.sqrt(2 / math.pi)
    k(f's_mov_b32 s20, {f32(c0)}\ns_mov_b32 s21, {f32(c0 * 0.044715)}')
    k('v_mov_b32 v4, s20')
    k(f'v_lshlrev_b32 v5, 6, v2\ns_lshl_b32 s22, s12, 3\ns_add_u32 s22, s22, {L_ST}\nv_add_u32 v5, s22, v5')
    k.wait_vm('h2')
    k.stamp()
    k('s_barrier')
    def gelu(a):
        o = []
        for blk in range(0, 16, 8):
            t = [T + blk + i for i in range(8)]; x = [a + blk + i for i in range(8)]
            o += [f'v_mul_f32 v{t[i]}, v{x[i]}, v{x[i]}' for i in range(8)]
            o += [f'v_fma_f32 v{t[i]}, v{t[i]}, s21, v4' for i in range(8)]
            o += [f'v_mul_f32 v{t[i]}, v{t[i]}, v{x[i]}' for i in range(8)]
            o += [f'v_exp_f32 v{t[i]}, v{t[i]}' for i in range(8)]
            o += [f'v_add_f32 v{t[i]}, 1.0, v{t[i]}' for i in range(8)]
            o += [f'v_rcp_f32 v{t[i]}, v{t[i]}' for i in range(8)]
            o += [f'v_mul_f32 v{x[i]}, v{x[i]}, v{t[i]}' for i in range(8)]
        return o
    def stats():
        o = []
        for tq in range(4):
            a = A2 + 4 * tq; sm = T + tq; sq = T + 4 + tq
            o += [f'v_add_f32 v{sm}, v{a}, v{a + 1}', f'v_mul_f32 v{sq}, v{a}, v{a}', f'v_add_f32 v{T + 8}, v{a + 2}, v{a + 3}', f'v_fmac_f32 v{sq}, v{a + 1}, v{a + 1}',
                  f'v_add_f32 v{sm}, v{sm}, v{T + 8}', f'v_fmac_f32 v{sq}, v{a + 2}, v{a + 2}', f'v_fmac_f32 v{sq}, v{a + 3}, v{a + 3}']
        for b in (T, T + 4):
            o += [f'v_permlane16_swap_b32 v{b}, v{b + 1}', f'v_permlane16_swap_b32 v{b + 2}, v{b + 3}', f'v_add_f32 v{b}, v{b}, v{b + 1}', f'v_add_f32 v{b + 2}, v{b + 2}, v{b + 3}']
        for b in (T, T + 4): o += [f'v_permlane32_swap_b32 v{b}, v{b + 2}']
        o += [f'v_add_f32 v{T + 10}, v{T}, v{T + 2}', f'v_add_f32 v{T + 11}, v{T + 4}, v{T + 6}', f'ds_write_b64 v5, v[{T + 10}:{T + 11}]']
        return o
    seq = [(f, tq) for f in range(32) for tq in range(4)]
    N = len(seq)
    def bslot(ks, tq): return FB + 4 * ((4 * (ks - KA) + tq) % 32)
    def rd(ks):
        for tq in range(4): k(f'ds_read_b128 {vr(bslot(ks, tq), 4)}, v1 offset:{16384 * tq + 1024 * ks}', tag=f'r{ks}')
    for ks in range(3): rd(ks)
    nr = 3
    side = gelu(A2) + stats()
    nw = LA
    for n, (f, tq) in enumerate(seq):
        ph, ks = worder[f]
        a = (A1 if ph else A2) + 4 * tq
        if tq == 0: k.wait_lgkm(f'r{ks}')
        k(f'v_mfma_f32_16x16x32_bf16 {vr(a, 4)}, {vr(W + 4 * (f % NW), 4)}, {vr(bslot(ks, tq), 4)}, {vr(a, 4) if ks else 0}')
        if tq == 0 and ph == 0 and nr < 16: rd(nr); nr += 1
        if tq == 3 and nw < 32: wload(nw); nw += 1
        if n == 95: k.stamp()
        if S0 <= n < S1:
            for x in side[(n - S0) * len(side) // (S1 - S0):(n + 1 - S0) * len(side) // (S1 - S0)]: k(x)
        if n == S1:
            k.drain(vm=False); k('s_barrier')
    k.stamp()
    for x in gelu(A1): k(x)
    k('v_and_b32 v6, 15, v2\nv_lshlrev_b32 v6, 4, v6\nv_lshrrev_b32 v7, 5, v2\nv_lshl_add_u32 v8, v7, 9, v6\nv_bfe_u32 v9, v2, 4, 1\nv_lshl_add_u32 v8, v9, 3, v8')
    k(f's_mul_i32 s17, s14, {2 * 56 * 1024}\ns_lshl_b32 s19, s18, 10\ns_add_u32 s17, s17, s19\ns_add_u32 s17, s17, {Z1F}\ns_add_u32 s19, s17, {56 * 1024}')
    for tq in range(4):
        a = A1 + 4 * tq; d = FB + 2 * tq
        k(f'v_cvt_pk_bf16_f32 v{d}, v{a}, v{a + 1}\nv_cvt_pk_bf16_f32 v{d + 1}, v{a + 2}, v{a + 3}')
        k(f'buffer_store_dwordx2 {vr(d, 2)}, v8, s[4:7], s{17 + 2 * (tq >> 1)} offen offset:{256 * (tq & 1)}')
    k(f's_mul_i32 s17, s12, {TRW}\ns_add_u32 s17, s17, {L_TR}')
    k('v_and_b32 v10, 15, v2\nv_lshrrev_b32 v11, 4, v2\nv_mul_u32_u24 v12, 40, v10\nv_lshl_add_u32 v12, v11, 3, v12\nv_add_u32 v12, s17, v12')
    k('v_bfe_u32 v13, v2, 2, 2\nv_lshl_add_u32 v13, v11, 3, v13\nv_mul_u32_u24 v13, 40, v13')
    k('v_and_b32 v14, 1, v2\nv_lshl_add_u32 v13, v14, 4, v13\nv_bfe_u32 v14, v2, 1, 1\nv_lshl_add_u32 v13, v14, 3, v13\nv_add_u32 v13, s17, v13')
    k(f'v_lshlrev_b32 v10, 3, v10\nv_add_u32 v10, {L_FIN}, v10')
    k('v_lshl_add_u32 v6, v11, 9, v6')
    k(f's_lshr_b32 s17, s18, 1\ns_lshl_b32 s17, s17, 17\ns_and_b32 s19, s18, 1\ns_lshl_b32 s19, s19, 8\ns_add_u32 s17, s17, s19\ns_lshl_b32 s19, s14, 12\ns_add_u32 s17, s17, s19\ns_add_u32 s17, s17, {Z2F}')
    k.stamp()
    k('s_barrier')
    k.stamp()
    for tq in range(4): k(f'ds_read_b64 {vr(T + 2 * tq, 2)}, v10 offset:{128 * tq}')
    for tq in range(4):
        a = A2 + 4 * tq; d = FB + 8 + 2 * tq
        for r in range(4): k(f'v_sub_f32 v{a + r}, v{a + r}, v{T + 2 * tq}')
        for r in range(4): k(f'v_mul_f32 v{a + r}, v{a + r}, v{T + 2 * tq + 1}')
        k(f'v_cvt_pk_bf16_f32 v{d}, v{a}, v{a + 1}\nv_cvt_pk_bf16_f32 v{d + 1}, v{a + 2}, v{a + 3}')
        k(f'ds_write_b64 v12, {vr(d, 2)} offset:{640 * tq}')
    k.drain(vm=False)
    for p in range(2):
        for m in range(2): k(f'ds_read_b64_tr_b16 {vr(FB + 16 + 4 * p + 2 * m, 2)}, v13 offset:{(32 * p + 4 * m) * 40}')
    for p in range(2): k(f'buffer_store_dwordx4 {vr(FB + 16 + 4 * p, 4)}, v6, s[4:7], s17 offen offset:{2048 * p}')
    k.end(STAMPS + 3 * 0x40000)
    k.label('L_k4_helper')
    k('s_waitcnt vmcnt(0)\ns_barrier')
    k(f'v_lshlrev_b32 v5, 6, v2\nv_add_u32 v5, {L_ST}, v5')
    k(f'v_lshlrev_b32 v6, 3, v2\ns_lshl_b32 s23, s14, 12\ns_add_u32 s23, s23, {STATS}\ns_lshl_b32 s19, s13, 9\ns_add_u32 s19, s19, s23')
    k('v_mov_b32 v7, 0x7fc00000')
    k('s_barrier')
    for i in range(3): k(f'ds_read_b128 {vr(64 + 4 * i, 4)}, v5 offset:{16 * i}')
    k('ds_read_b64 v[76:77], v5 offset:48')
    for i in range(1, 7): k(f'v_add_f32 v64, v64, v{64 + 2 * i}\nv_add_f32 v65, v65, v{65 + 2 * i}')
    for r in (64, 65): k(f'v_cmp_eq_u32 vcc, -1, v{r}\nv_cndmask_b32 v{r}, v{r}, v7, vcc')
    k('buffer_store_dwordx2 v[64:65], v6, s[4:7], s19 offen sc1')
    k('s_mov_b32 s22, 0')
    k.label('L_k4_poll')
    for j in range(8): k(f'buffer_load_dwordx2 {vr(66 + 2 * j, 2)}, v6, s[4:7], s23 offen offset:{512 * j} sc1')
    k('v_cmp_ne_u32 vcc, -1, v66')
    for r in range(67, 82): k(f'v_cmp_ne_u32 s[24:25], -1, v{r}\ns_and_b64 vcc, vcc, s[24:25]')
    k('s_cmp_eq_u64 vcc, -1\ns_cbranch_scc1 L_k4_got')
    k('s_add_u32 s22, s22, 1\ns_cmp_lt_u32 s22, 0x100000\ns_sleep 1\ns_cbranch_scc1 L_k4_poll')
    k.label('L_k4_got')
    for j in range(1, 8): k(f'v_add_f32 v66, v66, v{66 + 2 * j}\nv_add_f32 v67, v67, v{67 + 2 * j}')
    k(f's_mov_b32 s22, {f32(1 / 896)}')
    k('v_mul_f32 v66, s22, v66\nv_mul_f32 v67, s22, v67')
    k('v_fma_f32 v67, -v66, v66, v67\nv_max_f32 v67, 0, v67\nv_add_f32 v67, 0x3727c5ac, v67\nv_rsq_f32 v67, v67')
    k(f'v_add_u32 v6, {L_FIN}, v6\nds_write_b64 v6, v[66:67]')
    k.drain(vm=False)
    k('s_barrier')
    k.label('L_k4_end')
    k('s_endpgm')
    return k, (256, 512, LDS)
```

```python
from asmlib import *
from layout import *
from k0 import load_srd

def gen_k5(NA=28, LS=2, early=1, warm=0):
    k = Kernel('sp_kernel')
    L_X = 131072; LDS = L_X + 32768
    ACC = 16; FB = 48; EP = 80; AR = 92
    vB = [4, 5, 6, 7, 8, 9, 10, 11]
    k('s_cmp_ge_u32 s2, 256\ns_cbranch_scc1 L_k5_end')
    k('s_and_b32 s16, s2, 1\ns_lshl_b32 s16, s16, 2\ns_bfe_u32 s14, s2, 0x20003\ns_add_u32 s16, s16, s14')
    load_srd(k, 4, A_WS)
    k('v_and_b32 v2, 63, v0\nv_lshrrev_b32 v3, 6, v0')
    k('v_readfirstlane_b32 s12, v3')
    k('v_lshlrev_b32 v1, 4, v2')
    def warm_next():
        k(f's_lshr_b32 s36, s2, 3\ns_lshl_b32 s36, s36, 3\ns_add_u32 s36, s36, s12\ns_and_b32 s37, s2, 7\ns_lshl_b32 s37, s37, 18\ns_lshl_b32 s38, s36, 10\ns_add_u32 s37, s37, s38\ns_add_u32 s37, s37, {X1}')
        k(f's_mul_i32 s36, s36, 3584\ns_add_u32 s36, s36, {WOUTF}')
        k(f'v_lshlrev_b32 v14, 3, v1\nv_min_u32 v15, 3456, v14\nbuffer_load_dword v{EP + 9}, v15, s[4:7], s36 offen\nv_and_b32 v14, 0x380, v14\nbuffer_load_dword v{EP + 10}, v14, s[4:7], s37 offen')
    k('s_cmp_ge_u32 s16, 7\ns_cbranch_scc1 L_k5_idle')
    k.stamp(True)
    load_srd(k, 8, A_WSP)
    load_srd(k, 28, A_BSP)
    k('s_bfe_u32 s13, s2, 0x20001\ns_lshl_b32 s13, s13, 3\ns_lshr_b32 s33, s2, 5\ns_add_u32 s13, s13, s33')
    k('s_and_b32 s17, s12, 3\ns_lshr_b32 s18, s12, 2')
    k('s_lshl_b32 s19, s16, 2\ns_add_u32 s19, s19, s17')
    k('v_lshrrev_b32 v12, 3, v0')
    k('v_bfe_u32 v13, v12, 1, 3\nv_and_b32 v14, 7, v2\nv_xor_b32 v13, v13, v14\nv_lshlrev_b32 v13, 4, v13\nv_lshl_add_u32 v12, v12, 12, v13')
    k('s_lshl_b32 s20, s13, 18')
    k('s_lshl_b32 s21, s12, 10')
    def dma1(ss, i):
        st, kh = i >> 1, i & 1
        k(f's_add_u32 m0, s21, {(ss % 4) * 32768 + st * 16384 + kh * 8192}\ns_add_u32 s22, s20, {kh * 2048 + (2 * ss + st) * 128}')
        k('buffer_load_dwordx4 v12, s[8:11], s22 offen lds', tag=f'ss{ss}')
    k(f's_lshl_b32 s23, s19, 17\ns_lshl_b32 s24, s18, 16\ns_add_u32 s23, s23, s24\ns_add_u32 s23, s23, {Z2F}')
    def aload(f):
        if f and f % 4 == 0: k('s_add_u32 s23, s23, 4096')
        k(f'buffer_load_dwordx4 {vr(AR + 4 * (f % NA), 4)}, v1, s[4:7], s23 offen offset:{1024 * (f & 3)}')
    for ss in range(LS):
        for i in range(4): dma1(ss, i)
        if ss == 0 or not early:
            for f in range(8 * ss, 8 * ss + 8): aload(f)
        if ss == 0: k('s_barrier')
    k('v_and_b32 v13, 31, v2\nv_lshrrev_b32 v14, 5, v2\nv_bfe_u32 v15, v2, 1, 3\nv_xor_b32 v15, v15, v14\nv_lshlrev_b32 v15, 4, v15\nv_lshl_add_u32 v15, v13, 7, v15')
    k('s_lshl_b32 s24, s18, 13\ns_lshl_b32 s25, s18, 12\ns_add_u32 s26, s24, s25\ns_sub_u32 s25, 4096, s25\ns_add_u32 s25, s25, s24')
    for sg in range(4):
        k(f'v_xor_b32 v14, {32 * sg}, v15\nv_add_u32 v{vB[sg]}, s26, v14\nv_add_u32 v{vB[4 + sg]}, s25, v14')
    k('v_mov_b32 v3, 0x10000')
    seq = [(s, lam) for s in range(64) for lam in range(2)]
    D = 6
    def rd(n):
        s, lam = seq[n]; ss = s >> 3; st = (s >> 2) & 1
        off = (ss % 4) * 32768 + st * 16384
        k(f'ds_read_b128 {vr(FB + 4 * (n % 8), 4)}, v{vB[4 * lam + (s & 3)]} offset:{off & 0xffff}')
    def shift_addr(up):
        for r in vB: k(f'v_{"add" if up else "sub"}_u32 v{r}, v{r}, v3')
    nread = 0
    N = len(seq)
    assert NA >= 8 * LS + 8
    for ss in range(8):
        lo = 16 * ss
        if ss == 0:
            k.wait_vm('ss0'); k.stamp(); k('s_barrier')
            while nread < D: rd(nread); nread += 1
        req = []
        if ss + LS < 8:
            req = [(lambda i=i: dma1(ss + LS, i)) for i in range(4)] + [(lambda f=f: aload(f)) for f in range(8 * (ss + LS), 8 * (ss + LS) + 8)]
        if ss == 0 and early: req = [(lambda f=f: aload(f)) for f in range(8, 8 * LS)] + req
        for n in range(lo, lo + 16):
            s, lam = seq[n]; a = ACC + 16 * lam
            k(f'v_mfma_f32_32x32x16_bf16 {vr(a, 16)}, {vr(AR + 4 * (s % NA), 4)}, {vr(FB + 4 * (n % 8), 4)}, {vr(a, 16) if s else 0}')
            nb = lo + 16
            if n == nb - (D - 2) and ss < 7:
                k.wait_vm(f'ss{ss + 1}'); k.stamp(); k.drain(vm=False); k('s_barrier')
                if (ss + 1) % 2 == 0: shift_addr(((ss + 1) % 4) == 2)
                limit = nb + 16
            else:
                limit = nb if n < nb - (D - 2) else nb + 16
            while nread <= n + D and nread < min(limit, N): rd(nread); nread += 1
            for x in req[(n - lo) * len(req) // 16:(n - lo + 1) * len(req) // 16]: x()
            if n == 16 * (8 - LS) + 1:
                k(f's_lshl_b32 s24, s13, 1\ns_add_u32 s24, s24, s18\ns_mul_i32 s25, s24, {56 * 1024}\ns_lshl_b32 s26, s19, 11\ns_add_u32 s26, s25, s26')
                k(f's_add_u32 s26, s26, {Z1F}\ns_lshl_b32 s27, s19, 10\ns_add_u32 s25, s25, s27\ns_add_u32 s25, s25, {UF}\ns_lshl_b32 s24, s24, 6')
                k(f'buffer_load_dwordx4 {vr(EP, 4)}, v1, s[4:7], s26 offen\nbuffer_load_dwordx4 {vr(EP + 4, 4)}, v1, s[4:7], s26 offen offset:1024')
                if warm: warm_next()
                k(f'v_lshlrev_b32 v13, 1, v13\nbuffer_load_ushort v{EP + 8}, v13, s[28:31], s24 offen')
    k.stamp()
    k(f's_lshl_b32 s21, s12, 12\ns_add_u32 s22, s21, {L_X}\ns_xor_b32 s21, s21, 16384\ns_add_u32 s21, s21, {L_X}')
    k('v_add_u32 v4, s22, v1\nv_add_u32 v5, s21, v1')
    for q in range(4): k(f'ds_write_b128 v4, {vr(ACC + 16 + 4 * q, 4)} offset:{1024 * q}')
    k('v_bfe_u32 v6, v2, 4, 1\nv_mul_u32_u24 v6, 28672, v6\nv_lshrrev_b32 v7, 5, v2\nv_lshl_add_u32 v6, v7, 8, v6\nv_and_b32 v7, 15, v2\nv_lshl_add_u32 v6, v7, 4, v6')
    k(f'v_lshlrev_b32 v{EP + 8}, 16, v{EP + 8}\ns_mov_b32 s27, 0xffff0000')
    for r in range(16): k(f'v_add_f32 v{ACC + r}, v{ACC + r}, v{EP + 8}')
    for r in range(16):
        src = EP + (r >> 1)
        if r & 1: k(f'v_and_b32 v{AR + r}, s27, v{src}')
        else: k(f'v_lshlrev_b32 v{AR + r}, 16, v{src}')
    k.drain(vm=False); k('s_barrier')
    for q in range(4): k(f'ds_read_b128 {vr(FB + 4 * q, 4)}, v5 offset:{1024 * q}')
    for r in range(16): k(f'v_add_f32 v{ACC + r}, v{ACC + r}, v{FB + r}')
    for r in range(16): k(f'v_mul_f32 v{ACC + r}, v{ACC + r}, v{AR + r}')
    for i in range(8): k(f'v_cvt_pk_bf16_f32 v{FB + 16 + i}, v{ACC + 2 * i}, v{ACC + 2 * i + 1}')
    k(f'buffer_store_dwordx4 {vr(FB + 16, 4)}, v6, s[4:7], s25 offen\nbuffer_store_dwordx4 {vr(FB + 20, 4)}, v6, s[4:7], s25 offen offset:512')
    k.end(STAMPS + 4 * 0x40000)
    k.label('L_k5_idle')
    k('s_waitcnt lgkmcnt(0)')
    if warm: warm_next()
    k.label('L_k5_end')
    k('s_endpgm')
    return k, (256, 512, LDS)

def gen_k6(D=7):
    k = Kernel('wout_kernel')
    L_X = 114688; LDS = L_X + 16384
    AF = 16; ACC = 72; FB = 88; NFB = 12; EP = 136
    k('s_cmp_ge_u32 s2, 256\ns_cbranch_scc1 L_k6_end')
    k.stamp(True)
    load_srd(k, 4, A_WS)
    load_srd(k, 8, A_OUT)
    k('v_and_b32 v2, 63, v0\nv_lshrrev_b32 v3, 6, v0')
    k('v_readfirstlane_b32 s12, v3')
    k('s_and_b32 s13, s2, 7\ns_lshl_b32 s13, s13, 2\ns_lshr_b32 s14, s2, 6\ns_add_u32 s13, s13, s14\ns_bfe_u32 s14, s2, 0x30003')
    k('v_lshlrev_b32 v1, 4, v2')
    k('s_and_b32 s15, s12, 3\ns_lshr_b32 s16, s12, 2')
    k(f's_mul_i32 s17, s15, 28672\ns_mul_i32 s18, s16, 14336\ns_add_u32 s17, s17, s18\ns_mul_i32 s19, s13, 114688\ns_add_u32 s19, s19, s17\ns_add_u32 s19, s19, {UF}')
    k(f's_lshl_b32 s20, s14, 2\ns_add_u32 s20, s20, s15\ns_mul_i32 s21, s20, 28672\ns_add_u32 s21, s21, s18\ns_add_u32 s21, s21, {WOUTF}')
    def dma(st):
        for i in range(7):
            if i in (0, 4): k(f's_add_u32 m0, s17, {7168 * st + 1024 * i}\ns_add_u32 s22, s19, {7168 * st + 1024 * i}')
            k(f'buffer_load_dwordx4 v1, s[4:7], s22 offen offset:{1024 * (i & 3)} lds', tag=f'u{st}')
    def aload(f):
        if f and f % 4 == 0: k('s_add_u32 s21, s21, 4096')
        k(f'buffer_load_dwordx4 {vr(AF + 4 * f, 4)}, v1, s[4:7], s21 offen offset:{1024 * (f & 3)}')
    dma(0)
    for f in range(7): aload(f)
    k('s_barrier')
    dma(1)
    k('v_and_b32 v4, 15, v2\nv_lshrrev_b32 v5, 4, v2\nv_lshlrev_b32 v4, 10, v4\nv_lshl_add_u32 v4, v5, 3, v4\nv_lshlrev_b32 v5, 4, v5')
    k('s_lshl_b32 s23, s13, 16\ns_lshl_b32 s24, s16, 15\ns_add_u32 s23, s23, s24\ns_lshl_b32 s24, s20, 5\ns_add_u32 s23, s23, s24\ns_add_u32 s25, s23, 16384')
    k(f's_add_u32 s26, s23, {X1}\ns_add_u32 s27, s25, {X1}\ns_lshl_b32 s24, s20, 6\ns_add_u32 s24, s24, {MOD + 5 * 2048}')
    late = [(lambda f=f: aload(f)) for f in range(7, 14)] + [
        lambda: k(f'buffer_load_dwordx2 {vr(EP, 2)}, v4, s[4:7], s26 offen'), lambda: k(f'buffer_load_dwordx2 {vr(EP + 2, 2)}, v4, s[4:7], s27 offen'),
        lambda: k(f'buffer_load_dwordx4 {vr(EP + 4, 4)}, v5, s[4:7], s24 offen')]
    k('s_mul_i32 s28, s16, 57344\ns_add_u32 s29, s28, s18\ns_sub_u32 s28, 57344, s28\ns_add_u32 s28, s28, s18\nv_add_u32 v6, s29, v1\nv_add_u32 v7, s28, v1')
    seq = [(ks, lam) for ks in range(14) for lam in range(4)]
    N = len(seq)
    def rd(n):
        ks, lam = seq[n]
        k(f'ds_read_b128 {vr(FB + 4 * (n % NFB), 4)}, v{6 + (lam >> 1)} offset:{28672 * (lam & 1) + 1024 * ks}')
    k.wait_vm('u0'); k.stamp(); k('s_barrier')
    nread = 0
    while nread < D: rd(nread); nread += 1
    for n, (ks, lam) in enumerate(seq):
        a = ACC + 4 * lam
        k(f'v_mfma_f32_16x16x32_bf16 {vr(a, 4)}, {vr(AF + 4 * ks, 4)}, {vr(FB + 4 * (n % NFB), 4)}, {vr(a, 4) if ks else 0}')
        if n % 2 == 0 and late: late.pop(0)()
        if n == 28 - D:
            k.wait_vm('u1'); k.stamp(); k('s_barrier')
        while nread <= n + D and nread < (28 if n < 28 - D else N): rd(nread); nread += 1
    k.stamp()
    k(f's_lshl_b32 s22, s12, 11\ns_add_u32 s28, s22, {L_X}\ns_xor_b32 s22, s22, 8192\ns_add_u32 s22, s22, {L_X}\nv_add_u32 v6, s28, v1\nv_add_u32 v7, s22, v1')
    for q in range(2): k(f'ds_write_b128 v6, {vr(ACC + 8 + 4 * q, 4)} offset:{1024 * q}')
    k('s_mov_b32 s27, 0xffff0000')
    for i in range(8):
        if i & 1: k(f'v_and_b32 v{AF + i}, s27, v{EP + (i >> 1)}')
        else: k(f'v_lshlrev_b32 v{AF + i}, 16, v{EP + (i >> 1)}')
    k.drain(vm=False); k('s_barrier')
    for q in range(2): k(f'ds_read_b128 {vr(FB + 4 * q, 4)}, v7 offset:{1024 * q}')
    for i in range(8): k(f'v_add_f32 v{ACC + i}, v{ACC + i}, v{FB + i}')
    for i in range(8): k(f'v_fmac_f32 v{AF + i}, v{ACC + i}, v{EP + 4 + (i & 3)}')
    for i in range(4): k(f'v_cvt_pk_bf16_f32 v{FB + 8 + i}, v{AF + 2 * i}, v{AF + 2 * i + 1}')
    k(f'buffer_store_dwordx2 {vr(FB + 8, 2)}, v4, s[8:11], s23 offen\nbuffer_store_dwordx2 {vr(FB + 10, 2)}, v4, s[8:11], s25 offen')
    k.end(STAMPS + 5 * 0x40000)
    k.label('L_k6_end')
    k('s_endpgm')
    return k, (256, 512, LDS)
```

```python
import sys, importlib
from asmlib import *
def build(kernels, path):
    hdr = open('adaLN_cond__sliding_block_cached__mixer_gmlp__prompt.s.ref').read().split('; Override launch')[0]
    o = [hdr.rstrip()]
    for k, (g, b, lds) in kernels:
        o.append(f'; @launch kernel={k.name} grid=({g},1,1) block=({b},1,1) lds={lds}')
    o.append('.amdgcn_target "amdgcn-amd-amdhsa--gfx950"\n.text')
    seen = []
    for k, _ in kernels:
        if k.name in seen: continue
        seen.append(k.name)
        o.append(k.text())
        print(k.name, k.stats, 'vgpr', k.maxreg('v') + 1, 'sgpr', k.maxreg('s') + 1, file=sys.stderr)
    o.append('L_code_end:')
    o.append('.section .rodata,"a"')
    seen = []
    for k, _ in kernels:
        if k.name in seen: continue
        seen.append(k.name)
        o.append(k.descriptor())
    open(path, 'w').write('\n'.join(o) + '\n')
def opts(name):
    o = {}
    for a in sys.argv[2:]:
        if a.startswith(name + '.'):
            kk, v = a[len(name) + 1:].split('='); o[kk] = int(v)
    return o
if __name__ == '__main__':
    Kernel.STAMPS = 'stamps' in sys.argv
    Kernel.SC1 = {0: (), 1: ('buffer_store_dwordx4',), 2: ('buffer_store_dwordx4', 'buffer_store_dwordx2')}[opts('g').get('sc1', 1)]
    from k0 import gen_k0
    from k2 import gen_k2
    from k3 import gen_k3
    from k4 import gen_k4
    from k5 import gen_k5, gen_k6
    ks = [gen_k0(**opts('k0')), gen_k2(**opts('k2')), gen_k3(**opts('k3')), gen_k4(**opts('k4')), gen_k5(**opts('k5')), gen_k6(**opts('k6'))]
    build(ks, sys.argv[1] if len(sys.argv) > 1 else 'out.s')
```

```python
from asmlib import *
from layout import *

NT = ' nt'

def load_srd(k, s, arg):
    k(f's_load_dwordx2 s[{s}:{s+1}], s[0:1], {arg}')
    k(f's_mov_b32 s{s+2}, {SZ[arg]}')
    k(f's_mov_b32 s{s+3}, 0x20000')

def allreduce64(k, v, t, op='v_add_f32'):
    for r in (8, 4, 2, 1):
        k(f'{op}_dpp v{v}, v{v}, v{v} row_ror:{r} row_mask:0xf bank_mask:0xf')
    k(f'v_mov_b32 v{t}, v{v}\nv_permlane16_swap_b32 v{v}, v{t}\n{op} v{v}, v{v}, v{t}')
    k(f'v_mov_b32 v{t}, v{v}\nv_permlane32_swap_b32 v{v}, v{t}\n{op} v{v}, v{v}, v{t}')

def ln_row(k):
    k('s_mov_b32 s27, 0xffff0000')
    k('s_waitcnt vmcnt(8)')
    for i in range(8):
        if i & 1: k(f'v_and_b32 v{84 + i}, s27, v{80 + (i >> 1)}')
        else: k(f'v_lshlrev_b32 v{84 + i}, 16, v{80 + (i >> 1)}')
    k('v_add_f32 v92, v84, v85\nv_add_f32 v93, v86, v87\nv_add_f32 v94, v88, v89\nv_add_f32 v95, v90, v91')
    k('v_add_f32 v92, v92, v93\nv_add_f32 v94, v94, v95\nv_add_f32 v92, v92, v94')
    allreduce64(k, 92, 93)
    k('v_mul_f32 v92, 0x3b000000, v92')
    for i in range(8): k(f'v_sub_f32 v{84 + i}, v{84 + i}, v92')
    k('v_mul_f32 v92, v84, v84\nv_mul_f32 v93, v85, v85')
    for i in range(2, 8): k(f'v_fmac_f32 v{92 + (i & 1)}, v{84 + i}, v{84 + i}')
    k('v_add_f32 v92, v92, v93')
    allreduce64(k, 92, 93)
    k('v_mov_b32 v93, 0x3727c5ac')
    k('v_fmac_f32 v93, 0x3b000000, v92')
    k('v_rsq_f32 v93, v93')
    for i in range(8): k(f'v_mul_f32 v{84 + i}, v{84 + i}, v93')
    for i in range(4): k(f'v_cvt_pk_bf16_f32 v{80 + i}, v{84 + 2 * i}, v{85 + 2 * i}')
    k(f's_add_u32 s27, s17, {XN}')
    k('buffer_store_dwordx4 v[80:83], v3, s[4:7], s27 offen')

def warm_code(k, first, last, sa, vt, vd, uid):
    k(f's_getpc_b64 s[{sa}:{sa + 1}]')
    k.items.append(('rawlabel', f'L_pc{uid}'))
    k(f's_add_u32 s{sa}, s{sa}, {first}-L_pc{uid}\ns_addc_u32 s{sa + 1}, s{sa + 1}, {"-1" if uid else "0"}')
    k(f's_lshr_b32 s{sa + 2}, s2, 3\ns_mul_i32 s{sa + 2}, s{sa + 2}, (({last}-{first})/4096+1)*128')
    k(f'v_and_b32 v{vt}, 63, v0\nv_lshlrev_b32 v{vt}, 7, v{vt}\nv_min_u32 v{vt}, (({last}-{first})/4096)*128, v{vt}\nv_add_u32 v{vt}, s{sa + 2}, v{vt}')
    k(f'v_min_u32 v{vt}, {last}-{first}-4, v{vt}')
    k(f'global_load_dword v{vd}, v{vt}, s[{sa}:{sa + 1}]')

def gen_k0(code=1):
    k = Kernel('prep_kernel')
    k('s_cmp_ge_u32 s2, 256\ns_cbranch_scc1 L_k0_end')
    k.stamp(True)
    load_srd(k, 4, A_WS)
    load_srd(k, 12, A_X)
    k('v_and_b32 v1, 63, v0')
    k('v_lshrrev_b32 v2, 6, v0')
    k('v_readfirstlane_b32 s16, v2')
    k('s_lshl_b32 s17, s2, 13')
    k('v_lshlrev_b32 v3, 4, v0')
    k('buffer_load_dwordx4 v[80:83], v3, s[12:15], s17 offen' + NT)
    if code: warm_code(k, 'attn_kernel', 'L_code_end', 28, 4, 96, 0)
    k(f's_lshl_b32 s18, s2, 9\ns_add_u32 s18, s18, {STATS}\nv_mov_b32 v4, -1\nv_lshlrev_b32 v5, 2, v0')
    k('s_cmp_gt_u32 s16, 1\ns_cbranch_scc1 L_k0_nofill')
    k('buffer_store_dword v4, v5, s[4:7], s18 offen')
    k.items.append(('rawlabel', 'L_k0_nofill'))
    for lim, name in ((64, 'wq'), (128, 'wo'), (142, 'wout'), (170, 'win'), (186, 'v'), (202, 'k'), (250, 'mod')):
        k(f's_cmp_lt_u32 s2, {lim}\ns_cbranch_scc1 L_k0_{name}')
    k('s_waitcnt vmcnt(0)')
    ln_row(k)
    k('s_endpgm')

    def trans_job(name, first, arg, RS, RB, setup, m16=None):
        k.label(f'L_k0_{name}')
        load_srd(k, 8, arg)
        k(f's_sub_u32 s18, s2, {first}')
        setup()
        rows_per = 1024 // RB
        lanes_per_row = RB // 16
        k(f'v_lshrrev_b32 v4, {lanes_per_row.bit_length() - 1}, v1')
        k(f'v_lshl_add_u32 v4, v2, {(8 * rows_per).bit_length() - 1}, v4')
        k(f's_mov_b32 s21, {RS}')
        k('v_mul_lo_u32 v4, v4, s21')
        k(f'v_and_b32 v5, {lanes_per_row - 1}, v1')
        k('v_lshl_add_u32 v4, v5, 4, v4')
        k('s_lshl_b32 s22, s16, 13')
        for i in range(8):
            k(f's_add_u32 m0, s22, {1024 * i}')
            k(f's_add_u32 s23, s19, {i * rows_per * RS}')
            k('buffer_load_dwordx4 v4, s[8:11], s23 offen' + NT + ' lds', tag='dma')
        if m16:
            k('v_lshrrev_b32 v6, 4, v1\nv_bfe_u32 v7, v1, 2, 2\nv_lshl_add_u32 v6, v6, 3, v7')
            k(f'v_lshlrev_b32 v6, {RB.bit_length() - 1}, v6\nv_and_b32 v7, 3, v1\nv_lshl_add_u32 v6, v7, 3, v6')
        else:
            k('v_lshrrev_b32 v6, 5, v1')
            k('v_bfe_u32 v7, v1, 2, 2')
            k('v_lshl_add_u32 v6, v6, 3, v7')
            k(f'v_lshlrev_b32 v6, {RB.bit_length() - 1}, v6')
            k('v_bfe_u32 v7, v1, 4, 1')
            k('v_lshl_add_u32 v6, v7, 5, v6')
            k('v_and_b32 v7, 1, v1')
            k('v_lshl_add_u32 v6, v7, 4, v6')
            k('v_bfe_u32 v7, v1, 1, 1')
            k('v_lshl_add_u32 v6, v7, 3, v6')
        wavepart = {1024: 128, 512: 64, 256: 8192}[RB]
        k(f'v_lshl_add_u32 v6, v2, {wavepart.bit_length() - 1}, v6')
        k('v_lshlrev_b32 v8, 4, v1')
        k.ns = 1
        ln_row(k)
        k.stamp()
        k.wait_vm('dma')
        k.stamp()
        k('s_barrier')
        for f in range(8):
            if m16:
                per = 8 // m16[0]
                sl, tl = f % per, f // per
                base = 32 * sl * RB + 32 * tl
            else:
                if RB == 1024: sl, tl = f >> 1, f & 1
                elif RB == 512: sl, tl = f, 0
                else: sl, tl = f >> 2, f & 3
                base = 16 * sl * RB + 64 * tl
            for m in range(2):
                k(f'ds_read_b64_tr_b16 v[{16 + 4 * f + 2 * m}:{17 + 4 * f + 2 * m}], v6 offset:{base + 4 * m * RB}')
        run, stride = (8 // m16[0], m16[1]) if m16 else (4, 4096)
        for f in range(8):
            if f and f % run == 0: k(f's_add_u32 s20, s20, {stride}')
            k(f'buffer_store_dwordx4 v[{16 + 4 * f}:{19 + 4 * f}], v8, s[4:7], s20 offen offset:{1024 * (f % run)}')
        k.end(STAMPS)

    def s_wq():
        k('s_lshr_b32 s24, s18, 3\ns_and_b32 s25, s18, 7')
        k('s_lshl_b32 s19, s24, 19\ns_lshl_b32 s26, s25, 10\ns_add_u32 s19, s19, s26')
        k('s_lshl_b32 s20, s25, 3\ns_add_u32 s20, s20, s16\ns_lshl_b32 s20, s20, 16')
        k(f's_lshl_b32 s26, s24, 13\ns_add_u32 s20, s20, s26\ns_add_u32 s20, s20, {WQF}')
    trans_job('wq', 0, A_WQ, 8192, 1024, s_wq)
    def s_wo():
        k('s_lshl_b32 s19, s18, 16')
        k('s_and_b32 s24, s18, 0x38\ns_add_u32 s20, s24, s16\ns_lshl_b32 s20, s20, 16')
        k(f's_and_b32 s24, s18, 7\ns_lshl_b32 s24, s24, 13\ns_add_u32 s20, s20, s24\ns_add_u32 s20, s20, {WOF}')
    trans_job('wo', 64, A_WO, 1024, 1024, s_wo)
    def s_wout():
        k('s_lshl_b32 s19, s18, 16')
        k(f's_mul_i32 s20, s16, {4 * 28672}\ns_lshl_b32 s24, s18, 11\ns_add_u32 s20, s20, s24\ns_add_u32 s20, s20, {WOUTF}')
    trans_job('wout', 128, A_WOUT, 1024, 1024, s_wout, m16=(4, 28672))
    def s_win():
        k('s_mul_i32 s24, s18, 37\ns_lshr_b32 s24, s24, 8')
        k('s_mul_i32 s25, s24, 7\ns_sub_u32 s25, s18, s25')
        k(f's_mul_i32 s19, s24, {128 * 3584}\ns_lshl_b32 s26, s25, 9\ns_add_u32 s19, s19, s26')
        k('s_lshl_b32 s20, s25, 3\ns_add_u32 s20, s20, s16\ns_lshl_b32 s20, s20, 15')
        k(f's_lshl_b32 s26, s24, 12\ns_add_u32 s20, s20, s26\ns_add_u32 s20, s20, {WINF}')
    assert all((j * 37) >> 8 == j // 7 for j in range(28))
    trans_job('win', 142, A_WIN, 3584, 512, s_win, m16=(2, 16384))
    def s_v():
        k('s_lshr_b32 s24, s18, 1\ns_and_b32 s25, s18, 1')
        k(f's_lshl_b32 s19, s24, 19\ns_lshl_b32 s26, s25, 16\ns_add_u32 s19, s19, s26\ns_add_u32 s19, s19, {1536 * 256}')
        k(f's_lshl_b32 s20, s18, 16\ns_lshl_b32 s26, s16, 13\ns_add_u32 s20, s20, s26\ns_add_u32 s20, s20, {VF}')
    trans_job('v', 170, A_V, 256, 256, s_v)

    k.label('L_k0_k')
    load_srd(k, 8, A_K)
    k('s_sub_u32 s18, s2, 186')
    k('s_lshr_b32 s24, s18, 1\ns_and_b32 s25, s18, 1')
    k(f's_lshl_b32 s19, s24, 19\ns_lshl_b32 s26, s25, 16\ns_add_u32 s19, s19, s26\ns_add_u32 s19, s19, {1536 * 256}')
    k('s_lshl_b32 s26, s16, 13\ns_add_u32 s19, s19, s26')
    k(f's_lshl_b32 s20, s18, 16\ns_add_u32 s20, s20, s26\ns_add_u32 s20, s20, {KF}')
    k('v_and_b32 v4, 0x13, v1')
    k('v_and_b32 v5, 4, v1\nv_lshl_or_b32 v4, v5, 1, v4')
    k('v_and_b32 v5, 8, v1\nv_lshrrev_b32 v5, 1, v5\nv_or_b32 v4, v4, v5')
    k('v_lshlrev_b32 v4, 8, v4')
    k('v_lshrrev_b32 v5, 5, v1\nv_lshl_add_u32 v4, v5, 4, v4')
    k('v_lshlrev_b32 v8, 4, v1')
    for f in range(8):
        k(f'buffer_load_dwordx4 v[{16 + 4 * f}:{19 + 4 * f}], v4, s[8:11], s19 offen offset:{32 * f}')
    ln_row(k)
    k('s_add_u32 s21, s20, 4096')
    for f in range(8):
        k(f'buffer_store_dwordx4 v[{16 + 4 * f}:{19 + 4 * f}], v8, s[4:7], s{20 + (f >> 2)} offen offset:{1024 * (f & 3)}')
    k.end(STAMPS, 1)

    k.label('L_k0_mod')
    load_srd(k, 8, A_WMOD)
    load_srd(k, 12, A_C)
    k('s_sub_u32 s18, s2, 202')
    k('s_lshl_b32 s19, s18, 7')
    k('v_lshrrev_b32 v4, 3, v0')
    k('v_and_b32 v5, 7, v0')
    k('v_lshlrev_b32 v6, 4, v4')
    k('buffer_load_dwordx4 v[8:11], v6, s[12:15], 0 offen')
    k(f's_mov_b32 s21, {8 * 6144}')
    k('v_mul_lo_u32 v6, v4, s21')
    k('v_lshl_add_u32 v6, v5, 4, v6')
    for i in range(8):
        k(f's_add_u32 s23, s19, {i * 6144}')
        k(f'buffer_load_dwordx4 v[{16 + 4 * i}:{19 + 4 * i}], v6, s[8:11], s23 offen' + NT)
    ln_row(k)
    k('s_mov_b32 s24, 0xbfb8aa3b')
    k('s_mov_b32 s25, 0xffff0000')
    for i in range(8):
        src = 8 + (i >> 1)
        if i & 1: k(f'v_and_b32 v{48 + i}, s25, v{src}')
        else: k(f'v_lshlrev_b32 v{48 + i}, 16, v{src}')
    for i in range(8): k(f'v_mul_f32 v{56 + i}, s24, v{48 + i}')
    for i in range(8): k(f'v_exp_f32 v{56 + i}, v{56 + i}')
    for i in range(8): k(f'v_add_f32 v{56 + i}, 1.0, v{56 + i}')
    for i in range(8): k(f'v_rcp_f32 v{56 + i}, v{56 + i}')
    for i in range(8): k(f'v_mul_f32 v{48 + i}, v{48 + i}, v{56 + i}')
    for i in range(8): k(f'v_cvt_pk_bf16_f32 v{48 + i}, v{48 + i}, v{48 + i}')
    for i in range(8): k(f'v_and_b32 v{48 + i}, s25, v{48 + i}')
    for i in range(8):
        for j in range(8):
            src = 16 + 4 * i + (j >> 1)
            if j & 1: k(f'v_and_b32 v{72 + j}, s25, v{src}')
            else: k(f'v_lshlrev_b32 v{72 + j}, 16, v{src}')
        for j in range(8):
            if i == 0: k(f'v_mul_f32 v{64 + j}, v{48 + i}, v{72 + j}')
            else: k(f'v_fmac_f32 v{64 + j}, v{48 + i}, v{72 + j}')
    k('v_lshlrev_b32 v6, 5, v0')
    k('ds_write_b128 v6, v[64:67]\nds_write_b128 v6, v[68:71] offset:16')
    k('v_lshlrev_b32 v7, 11, v2\nv_lshl_add_u32 v7, v1, 2, v7')
    k.drain(vm=False)
    for i in range(8): k(f'ds_read_b32 v{16 + i}, v7 offset:{256 * i}')
    for i in range(1, 8): k(f'v_add_f32 v16, v16, v{16 + i}')
    k('v_lshlrev_b32 v7, 2, v0')
    k('ds_write_b32 v7, v16 offset:16384')
    k.drain(vm=False)
    k('s_barrier')
    k('s_cmp_lg_u32 s16, 0\ns_cbranch_scc1 L_k0_end')
    for i in range(8): k(f'ds_read_b32 v{16 + i}, v7 offset:{16384 + 256 * i}')
    for i in range(1, 8): k(f'v_add_f32 v16, v16, v{16 + i}')
    k('v_cvt_pk_bf16_f32 v16, v16, v16\nv_and_b32 v16, s25, v16')
    k('s_lshr_b32 s24, s18, 3')
    k('s_cmp_eq_u32 s24, 1\ns_cselect_b32 s26, 1.0, 0\ns_cmp_eq_u32 s24, 4\ns_cselect_b32 s26, 1.0, s26')
    k('v_add_f32 v16, s26, v16')
    k('v_cvt_pk_bf16_f32 v16, v16, v16\nv_and_b32 v16, s25, v16')
    k(f's_lshl_b32 s19, s18, 8\ns_add_u32 s19, s19, {MOD}')
    k('buffer_store_dword v16, v7, s[4:7], s19 offen')
    k.end(STAMPS, 1)
    k.label('L_k0_end')
    k('s_endpgm')
    return k, (256, 512, 65536)
```

```python
from asmlib import *
from layout import *
from k0 import load_srd
import struct, math

def f32(x): return '0x%08x' % struct.unpack('<I', struct.pack('<f', x))[0]

REF_B = 50.0
REF_T = 80.0
L_K = [0, 32768]; L_VA = 65536; L_X = 98304; L_VPRE = 131072; L_VEND = 139264; L_H = 32768
vA0, vKa, vKb, vV1, vV2 = 1, 2, 3, 4, 5
vL, vL2, vMT, vT0, vT1, vO = 6, 7, 8, 9, 10, 11
vH = [12, 13, 14, 15, 2, 3, 6, 7]
FB = 16
CI = 48
QR = 64
OA = 96
SB = 160
SP = 224

def gen_k2(D=6, prio=0, G=2, NPRE=4, NLN=8, R=4, rotate=0, nowo=0, nosm=0, nodma=0, QB=0, OB=0, LA=20, wsp=1, OR=8, winwarm=0, pasc='', nochk=0, noexp=0):
    k = Kernel('attn_kernel')
    stamp = k.stamp
    k('s_cmp_ge_u32 s2, 256\ns_cbranch_scc1 L_k2_end')
    stamp(True)
    load_srd(k, 4, A_WS)
    load_srd(k, 8, A_X)
    load_srd(k, 36, A_WSP)
    k('v_and_b32 v1, 63, v0\nv_lshrrev_b32 v9, 6, v0')
    k('v_readfirstlane_b32 s12, v9')
    lg = G.bit_length() - 1
    k(f's_and_b32 s13, s2, {8 // G - 1}\ns_lshl_b32 s13, s13, {lg}\ns_bfe_u32 s15, s2, {3 | (lg << 16)}\ns_add_u32 s13, s13, s15')
    k(f's_bfe_u32 s14, s2, {(3 - lg) | (lg << 16)}\ns_lshl_b32 s14, s14, {5 - lg}\ns_lshr_b32 s33, s2, {3 + lg}\ns_add_u32 s14, s14, s33')
    if not rotate: k('s_mov_b32 s33, 0')
    elif lg < 2: k(f's_lshr_b32 s33, s33, {2 - lg}')
    elif lg > 2: k(f's_lshl_b32 s33, s33, {lg - 2}')
    k('v_lshlrev_b32 v10, 5, v1')
    k('v_lshlrev_b32 v1, 4, v1')
    k(f's_lshl_b32 s15, s14, 16\ns_lshl_b32 s16, s12, 13\ns_add_u32 s15, s15, s16\ns_add_u32 s15, s15, {XN}\ns_add_u32 s16, s15, 4096')
    for j in range(8):
        k(f'buffer_load_dwordx4 {vr(FB + 4 * j, 4)}, v1, s[4:7], s{15 + (j >> 2)} offen offset:{1024 * (j & 3)}')
    assert MOD == 0
    k('buffer_load_dwordx4 v[96:99], v10, s[4:7], 0 offen\nbuffer_load_dwordx4 v[100:103], v10, s[4:7], 0 offen offset:16')
    k('buffer_load_dwordx4 v[104:107], v10, s[4:7], 0 offen offset:2048\nbuffer_load_dwordx4 v[108:111], v10, s[4:7], 0 offen offset:2064')
    k('s_lshl_b32 s17, s13, 3\ns_add_u32 s17, s17, s12\ns_lshl_b32 s17, s17, 16')
    k(f's_add_u32 s18, s17, {WOF}\ns_add_u32 s17, s17, {WQF}')
    NR = 36
    def ring(f):
        i = f % NR
        return SB + 4 * i if i < 24 else CI + 4 * (i - 24)
    k('s_lshl_b32 s32, s33, 13')
    def wload(f, reg, sp):
        if f % 4 == 0:
            k(f's_add_u32 s34, s32, {1024 * f}\ns_and_b32 s34, s34, 0xffff\ns_add_u32 s34, s34, s{sp}')
        k(f'buffer_load_dwordx4 {vr(reg, 4)}, v1, s[4:7], s34 offen offset:{1024 * (f & 3)}')
    k(f's_lshl_b32 s21, s12, 12\ns_lshl_b32 s22, s12, 10\ns_lshl_b32 s19, s13, 17\ns_add_u32 s20, s19, {VF}\ns_add_u32 s19, s19, {KF}')
    def dma(lds, gbase_s, goff, per_wave_kb, tag):
        out = []
        wpart = {4: 's21', 1: 's22', 3: 's23'}[per_wave_kb]
        out.append(f's_add_u32 m0, {wpart}, {lds}')
        out.append(f's_add_u32 s24, s{gbase_s}, {wpart}')
        if goff: out.append(f's_add_u32 s24, s24, {goff}')
        for i in range(per_wave_kb):
            out.append((f'buffer_load_dwordx4 v1, s[4:7], s24 offen offset:{1024 * i} lds', tag))
        return out
    def put(lst):
        for x in lst:
            if isinstance(x, tuple): k(x[0], tag=x[1])
            elif callable(x): x()
            else: k(x)
    k('s_mul_i32 s23, s12, 3072')
    if prio == 1:
        k('s_cmp_lt_u32 s12, 4\ns_cbranch_scc1 L_k2_noprio\ns_setprio 1')
        k.items.append(('rawlabel', 'L_k2_noprio'))
    k('v_lshrrev_b32 v9, 4, v1')
    k('s_and_b32 s25, s12, 1')
    k('s_lshr_b32 s26, s12, 2\ns_lshl_b32 s26, s26, 15\ns_and_b32 s27, s12, 3\ns_lshl_b32 s27, s27, 7\ns_add_u32 s26, s26, s27')
    k(f's_add_u32 s26, s26, {L_H}')
    k('s_lshl_b32 s27, s33, 3\nv_subrev_u32 v10, s27, v9\nv_and_b32 v10, 63, v10')
    k('v_lshlrev_b32 v11, 9, v10')
    k('v_and_b32 v10, 7, v10\nv_lshl_add_u32 v11, v10, 4, v11\nv_add_u32 v11, s26, v11')
    k('v_lshrrev_b32 v10, 5, v9\nv_and_b32 v9, 31, v9\nv_xor_b32 v9, v9, v10\nv_lshlrev_b32 v9, 4, v9\nv_lshl_add_u32 v9, v10, 9, v9')
    k(f's_lshl_b32 s26, s25, 15\ns_add_u32 s27, s26, {L_H}\ns_sub_u32 s26, {L_H + 32768}, s26')
    for b in range(4):
        k(f'v_xor_b32 v10, {32 * b}, v9')
        k(f'v_add_u32 v{vH[b]}, s27, v10\nv_add_u32 v{vH[4 + b]}, s26, v10')
    k('s_mov_b32 s28, 0xffff0000')
    k('s_barrier')
    stamp()
    for f in range(NPRE): wload(f, ring(f), 17)
    stamp()
    nw = NPRE
    for j in range(8):
        t = 112 + 8 * (j & 1); p = 128 + 4 * (j & 1)
        for i in range(8):
            src = FB + 4 * j + (i >> 1)
            if i & 1: k(f'v_and_b32 v{t + i}, s28, v{src}')
            else: k(f'v_lshlrev_b32 v{t + i}, 16, v{src}')
        for i in range(8): k(f'v_fma_f32 v{t + i}, v{t + i}, v{104 + i}, v{96 + i}')
        if j == 0: stamp()
        for i in range(4): k(f'v_cvt_pk_bf16_f32 v{p + i}, v{t + 2 * i}, v{t + 2 * i + 1}')
        k(f'v_xor_b32 v10, {16 * j}, v11')
        k(f'ds_write_b128 v10, {vr(p, 4)}')
        while nw < NPRE + NLN * (j + 1) // 8: wload(nw, ring(nw), 17); nw += 1
    stamp()
    k.drain(vm=False)
    k('s_barrier')
    def qacc(e, lam): return OA + 16 * (2 * e + lam)
    def bbuf(s, lam): return FB + 4 * ((2 * s + lam) % 8)
    def bread_q(s):
        for lam in range(2): k(f'ds_read_b128 {vr(bbuf(s, lam), 4)}, v{vH[4 * lam + (s & 3)]} offset:{1024 * s}')
    def chunks(lst):
        out = []; cur = []
        for x in lst:
            cur.append(x)
            if isinstance(x, tuple): out.append(cur); cur = []
        return out
    qflat = chunks(dma(L_K[0], 19, 0, 4, 'K0') + dma(L_VPRE, 20, 0, 1, 'K0'))
    for s in range(3): bread_q(s)
    for s in range(32):
        for e in range(2):
            for lam in range(2):
                c = vr(qacc(e, lam), 16) if s else '0'
                k(f'v_mfma_f32_32x32x16_bf16 {vr(qacc(e, lam), 16)}, {vr(ring(2 * s + e), 4)}, {vr(bbuf(s, lam), 4)}, {c}')
            for _ in range((R + 1 - e) // 2):
                if nw < 64 and nw <= 2 * s + e + LA: wload(nw, ring(nw), 17); nw += 1
            if e == 0 and s + 3 < 32: bread_q(s + 3)
            if e == 1 and s % 4 == 3 and s < 31: stamp()
            if e == 1 and s >= 16 and qflat: put(qflat.pop(0))
            if e == 1 and QB and (s + 1) % QB == 0 and s < 31: k('s_barrier')
    stamp()
    assert nw == 64
    k('s_lshl_b32 s26, s25, 12\ns_sub_u32 s27, 4096, s26')
    k(f'v_add_u32 v{vKa}, s26, v1\nv_add_u32 v{vKb}, s27, v1\nv_add_u32 v{vV1}, 0x10000, v1\nv_add_u32 v{vV2}, 0x20000, v1')
    k(f's_mov_b32 s29, {f32(math.log2(math.e) / math.sqrt(128))}')
    k(f'v_add_u32 v{vT0}, s21, v{vV1}')
    k(f's_xor_b32 s26, s21, 4096\nv_add_u32 v{vT1}, s26, v{vV1}')
    for lam in (1, 0):
        for e in range(2):
            a = qacc(e, lam)
            for r in range(16): k(f'v_mul_f32 v{a + r}, s29, v{a + r}')
            for hf in range(2):
                u = 2 * e + hf
                dst = (FB + 4 * u) if lam else (QR + 4 * u)
                for i in range(4): k(f'v_cvt_pk_bf16_f32 v{dst + i}, v{a + 8 * hf + 2 * i}, v{a + 8 * hf + 2 * i + 1}')
                if lam: k(f'ds_write_b128 v{vT0}, {vr(dst, 4)} offset:{L_X - 65536 + 1024 * u}')
    k.wait_vm('K0')
    stamp()
    k.drain(vm=False)
    k('s_barrier')
    for u in range(4): k(f'ds_read_b128 {vr(QR + 16 + 4 * u, 4)}, v{vT1} offset:{L_X - 65536 + 1024 * u}')
    def S(t): return SB + 16 * (t % 4)
    def kfrag(t, u):
        return f'v{vKa if u < 4 else vKb} offset:{L_K[(t >> 2) & 1] + (t & 3) * 8192 + (u & 3) * 1024}'
    def vfrag(t, e, dt):
        o = (e * 4 + dt) * 1024
        if t == 0: return f'v{vV2} offset:{L_VPRE - 131072 + o}'
        if t >= 13: return f'v{vV2} offset:{L_VEND - 131072 + (t - 13) * 8192 + o}'
        c = (t - 1) >> 2
        return f'v{vV1} offset:{(32768 if c == 1 else 0) + ((t - 1) & 3) * 8192 + o}'
    seq = []; group_start = {}
    def qk(t): return [('qk', t, u) for u in range(8)]
    def pv(t): return [('pv', t, i) for i in range(8)]
    seq += qk(0) + qk(1) + qk(2)
    for t in range(16):
        group_start[t] = len(seq)
        if t + 3 < 16:
            for a, b in zip(qk(t + 3), pv(t)): seq += [a, b]
        else: seq += pv(t)
    N = len(seq)
    bars = {group_start[1]: ('B2', 'S1'), group_start[5]: ('B3', 'S2'), group_start[9]: ('B4', 'S3')}
    after_bar = {
        'B1': dma(L_K[1], 19, 32768, 4, 'S1') + dma(L_VA, 20, 8192, 4, 'S1') + dma(L_VEND, 20, 13 * 8192, 3, 'S1'),
        'B2': dma(L_K[0], 19, 65536, 4, 'S2') + dma(L_X, 20, 8192 + 32768, 4, 'S2'),
        'B3': dma(L_K[1], 19, 98304, 4, 'S3') + dma(L_VA, 20, 8192 + 65536, 4, 'S3'),
        'B4': [],
    }
    def frag_addr(n):
        kind, t, i = seq[n]
        return kfrag(t, i) if kind == 'qk' else vfrag(t, i >> 2, i & 3)
    def fbuf(n): return FB + 4 * (n % 8)
    def mfma(n):
        kind, t, i = seq[n]
        if kind == 'qk':
            c = vr(S(t), 16) if i else ('0' if t < 2 else vr(CI, 16))
            return f'v_mfma_f32_32x32x16_bf16 {vr(S(t), 16)}, {vr(fbuf(n), 4)}, {vr(QR + 4 * i, 4)}, {c}'
        e, dt = i >> 2, i & 3
        c = vr(OA + 16 * dt, 16) if (t or e) else '0'
        return f'v_mfma_f32_32x32x16_bf16 {vr(OA + 16 * dt, 16)}, {vr(fbuf(n), 4)}, {vr(S(t) + 4 * e, 4)}, {c}'
    def tile_max(t, dst):
        s = S(t); o = [f'v_max3_f32 v{dst}, v{s}, v{s + 1}, v{s + 2}']
        for i in range(3, 15, 2): o.append(f'v_max3_f32 v{dst}, v{dst}, v{s + i}, v{s + i + 1}')
        o.append(f'v_max_f32 v{dst}, v{dst}, v{s + 15}')
        return o
    def sm(t):
        s = S(t); o = []
        for hf in range(2):
            for r in range(8 * hf, 8 * hf + 8): o.append(f'v_exp_f32 v{s + r}, v{s + r}')
            for r in range(8 * hf, 8 * hf + 8):
                acc = vL if r & 1 else vL2
                if t == 0 and r < 2: o.append(f'v_mov_b32 v{acc}, v{s + r}')
                else: o.append(f'v_add_f32 v{acc}, v{acc}, v{s + r}')
            for i in range(4): o.append(f'v_cvt_pk_bf16_f32 v{s + 4 * hf + i}, v{s + 8 * hf + 2 * i}, v{s + 8 * hf + 2 * i + 1}')
        a = o[0:8]; b = o[8:16]; c = o[16:20]; d = o[20:28]; e = o[28:36]; f = o[36:40]
        out = a[:]
        for x, y in zip(d, b): out += [x, y]
        out += c + e + f
        return out
    def check(t):
        return [f'v_cmp_lt_f32 vcc, s30, v{vMT}', f's_cbranch_vccnz L_fix{t}', ('LABEL', f'L_ret{t}')]
    k(f's_mov_b32 s30, {f32(REF_T)}\ns_mov_b32 s31, {f32(REF_B)}')
    fill = [[] for _ in range(N)]
    def spread(lo, hi, ins):
        n = len(ins)
        for j, x in enumerate(ins): fill[lo + (j * (hi - lo)) // n].append(x)
    start = tile_max(0, vMT) + [f'v_mov_b32 v{vT0}, v{vMT}', f'v_permlane32_swap_b32 v{vMT}, v{vT0}', f'v_max_f32 v{vMT}, v{vMT}, v{vT0}',
                                f'v_add_f32 v{vMT}, s31, v{vMT}', f'v_ceil_f32 v{vMT}, v{vMT}', f'v_sub_f32 v{CI}, 0, v{vMT}']
    start += [f'v_mov_b32 v{CI + i}, v{CI}' for i in range(1, 16)]
    spread(10, 16, start)
    spread(16, 24, [f'v_add_f32 v{S(0) + r}, v{S(0) + r}, v{CI}' for r in range(16)] + sm(0)
           + [f'v_add_f32 v{S(1) + r}, v{S(1) + r}, v{CI}' for r in range(16)] + tile_max(1, vMT) + check(1))
    for t in range(15):
        lo = group_start[t]; hi = group_start[t + 1]
        work = sm(t + 1)
        if t + 2 < 16: work = work + ([] if nochk else tile_max(t + 2, vMT)) + check(t + 2)
        if noexp: work = [x.replace('v_exp_f32', 'v_mov_b32') if isinstance(x, str) else x for x in work]
        if not nosm: spread(lo, hi, work)
    wslots = [SP + 4 * i for i in range(8)] + [QR + 4 * i for i in range(8)] + [CI + 4 * i for i in range(4)] + \
             [S(12) + 4 * i for i in range(4)] + [S(13) + 4 * i for i in range(4)] + [S(14) + 4 * i for i in range(4)] + [S(15) + 4 * i for i in range(4)]
    NW = len(wslots)
    def wl(f): return lambda: wload(f, wslots[f % NW], 18)
    spread(group_start[9], group_start[13], [wl(f) for f in range(8)])
    spread(group_start[13], N, [wl(f) for f in range(8, 24)])
    def spread_dma(name, lo, hi):
        ch = chunks(after_bar[name])
        if nodma: return
        for j, c in enumerate(ch): fill[lo + (j * (hi - lo)) // len(ch)] += c
    spread_dma('B1', 0, 22)
    spread_dma('B2', group_start[1] - (D - 2), group_start[1] + 36)
    spread_dma('B3', group_start[5] - (D - 2), group_start[5] + 36)
    def warm(j):
        return [f's_lshl_b32 s35, s2, 15', f's_add_u32 s35, s35, {8192 * j}', f's_cmp_eq_u32 s12, {2 * j}', f's_cselect_b32 s35, s35, {SZ[A_WSP]}',
                f'v_lshlrev_b32 v{vO}, 3, v1', f'buffer_load_dword v0, v{vO}, s[36:39], s35 offen']
    if wsp:
        for j, t in enumerate((1, 5, 9)): fill[group_start[t] - (D - 2)] += warm(j)
    nread = 0
    def reads_upto(m, limit):
        nonlocal nread
        while nread <= m and nread < limit:
            k(f'ds_read_b128 {vr(fbuf(nread), 4)}, {frag_addr(nread)}'); nread += 1
    barlist = sorted(bars)
    def next_bar(n):
        for b in barlist:
            if b > n - 1 and b not in done: return b
        return N
    done = set()
    reads_upto(D - 1, N)
    for n in range(N):
        k(mfma(n))
        nb = next_bar(n)
        if nb < N and n == nb - (D - 2):
            name, tag = bars[nb]
            k.wait_vm(tag); stamp(); k.drain(vm=False); k('s_barrier'); done.add(nb)
            nb = next_bar(n)
        reads_upto(n + D, nb)
        for x in fill[n]:
            if isinstance(x, tuple) and x[0] == 'LABEL': k.items.append(('rawlabel', x[1]))
            else: put([x])
    stamp()
    k(f'v_add_f32 v{vL}, v{vL}, v{vL2}')
    k(f'v_mov_b32 v{vT0}, v{vL}\nv_permlane32_swap_b32 v{vL}, v{vT0}\nv_add_f32 v{vL}, v{vL}, v{vT0}\nv_rcp_f32 v{vL}, v{vL}')
    k(f's_and_b32 s26, s12, 6\ns_sub_u32 s26, s26, s33\ns_add_u32 s27, s26, 1\ns_and_b32 s26, s26, 7\ns_and_b32 s27, s27, 7\ns_mul_i32 s24, s25, {L_X}')
    k(f's_lshl_b32 s26, s26, 12\ns_lshl_b32 s27, s27, 12\ns_add_u32 s26, s26, s24\ns_add_u32 s27, s27, s24\nv_add_u32 v{vO}, s26, v1\nv_add_u32 v{vT1}, s27, v1')
    nw = 24
    for dt in range(4):
        a = OA + 16 * dt
        for r in range(16): k(f'v_mul_f32 v{a + r}, v{a + r}, v{vL}')
        for hf in range(2):
            dst = FB + 4 * (2 * dt + hf)
            for i in range(4): k(f'v_cvt_pk_bf16_f32 v{dst + i}, v{a + 8 * hf + 2 * i}, v{a + 8 * hf + 2 * i + 1}')
            k(f'ds_write_b128 v{vO if dt < 2 else vT1}, {vr(dst, 4)} offset:{1024 * ((2 * dt + hf) & 3)}')
        for f in range(nw, nw + 3): wload(f, wslots[f], 18)
        nw += 3
    assert nw == NW
    stamp()
    k.drain(vm=False)
    k('s_barrier')
    def bread_o(s):
        k(f'ds_read_b128 {vr(bbuf(s, 0), 4)}, v1 offset:{1024 * s}')
        k(f'ds_read_b128 {vr(bbuf(s, 1), 4)}, v{vV1} offset:{L_X - 65536 + 1024 * s}')
    for s in range(3): bread_o(s)
    for s in range(32):
        for e in range(2):
            for tt in range(2):
                c = vr(qacc(e, tt), 16) if s else '0'
                k(f'v_mfma_f32_32x32x16_bf16 {vr(qacc(e, tt), 16)}, {vr(wslots[(2 * s + e) % NW], 4)}, {vr(bbuf(s, tt), 4)}, {c}')
            if nw < 64 and nw <= 2 * s + e + NW and nw - NW < ((2 * s + e + 1) * OR + 7) // 8 and not nowo: wload(nw, wslots[nw % NW], 18); nw += 1
            if e == 0 and s + 3 < 32: bread_o(s + 3)
            if e == 1 and OB and (s + 1) % OB == 0 and s < 31: k('s_barrier')
            if e == 1 and s == 18 and wsp: put(warm(3))
            if e == 1 and s == 22 and winwarm:
                k(f's_and_b32 s35, s2, 1\ns_lshr_b32 s24, s12, 2\ns_lshl_b32 s24, s24, 1\ns_add_u32 s35, s35, s24\ns_mul_i32 s35, s35, {28 * 16384}')
                k(f's_lshr_b32 s24, s2, 3\ns_lshl_b32 s24, s24, 2\ns_and_b32 s34, s12, 3\ns_add_u32 s24, s24, s34\ns_mul_i32 s24, s24, 3584\ns_add_u32 s35, s35, s24\ns_add_u32 s35, s35, {WINF}')
                k(f'v_lshlrev_b32 v{vT1}, 3, v1\nv_min_u32 v{vT1}, 3456, v{vT1}\nbuffer_load_dword v0, v{vT1}, s[4:7], s35 offen')
            if e == 1 and s == 20:
                k(f's_lshl_b32 s35, s2, 13\ns_lshl_b32 s24, s12, 10\ns_add_u32 s35, s35, s24')
                k(f'v_lshlrev_b32 v{vT1}, 3, v1\nv_and_b32 v{vT1}, 0x380, v{vT1}\nbuffer_load_dword v0, v{vT1}, s[8:11], s35 offen')
    stamp()
    k(f's_lshl_b32 s26, s13, 21\ns_lshl_b32 s27, s14, 16\ns_add_u32 s26, s26, s27\ns_add_u32 s26, s26, s21\ns_add_u32 s26, s26, {PA}\ns_add_u32 s27, s26, 32768')
    for e in range(2):
        for tt in range(2):
            a = qacc(e, tt)
            for hf in range(2):
                dst = FB + 4 * (4 * e + 2 * tt + hf)
                for i in range(4): k(f'v_cvt_pk_bf16_f32 v{dst + i}, v{a + 8 * hf + 2 * i}, v{a + 8 * hf + 2 * i + 1}')
                k(f'buffer_store_dwordx4 {vr(dst, 4)}, v1, s[4:7], s{26 + tt} offen offset:{2048 * e + 1024 * hf}' + (' sc1' if pasc else ''))
    k.end(STAMPS + 1 * 0x40000)
    k.label('L_k2_end')
    k('s_endpgm')
    for t in range(1, 2 if nosm else 16):
        k.label(f'L_fix{t}')
        k('s_nop 15')
        k(f'v_mov_b32 v{vT0}, v{vMT}\ns_nop 1\nv_permlane32_swap_b32 v{vMT}, v{vT0}\nv_max_f32 v{vMT}, v{vMT}, v{vT0}')
        k(f'v_add_f32 v{vMT}, s31, v{vMT}\nv_ceil_f32 v{vMT}, v{vMT}\nv_max_f32 v{vMT}, 0, v{vMT}')
        k(f'v_min_f32 v{vT0}, 0x43800000, v{vMT}\nv_cvt_i32_f32 v{vT0}, v{vT0}\nv_sub_u32 v{vT0}, 0, v{vT0}')
        if t >= 2:
            for r in range(64): k(f'v_ldexp_f32 v{OA + r}, v{OA + r}, v{vT0}')
        k(f'v_ldexp_f32 v{vL}, v{vL}, v{vT0}\nv_ldexp_f32 v{vL2}, v{vL2}, v{vT0}')
        p = S(t - 1)
        for i in range(8):
            k(f'v_lshlrev_b32 v{vT1}, 16, v{p + i}\nv_and_b32 v{p + i}, s28, v{p + i}')
            k(f'v_ldexp_f32 v{vT1}, v{vT1}, v{vT0}\nv_ldexp_f32 v{p + i}, v{p + i}, v{vT0}')
            k(f'v_cvt_pk_bf16_f32 v{p + i}, v{vT1}, v{p + i}')
        for tt in (t, t + 1):
            if tt < 16:
                for r in range(16): k(f'v_sub_f32 v{S(tt) + r}, v{S(tt) + r}, v{vMT}')
        if t + 2 < 16:
            for r in range(16): k(f'v_sub_f32 v{CI + r}, v{CI + r}, v{vMT}')
        k(f's_nop 1\ns_branch L_ret{t}')
    return k, (256, 512, 163840)
```
